```python
import torch

def _softmax(x, axis=-1):
    return torch.softmax(x, dim=axis)
def _gelu(x):
    return torch.nn.functional.gelu(x, approximate="tanh")
def _silu(x):
    return torch.nn.functional.silu(x)
def _sigmoid(x):
    return torch.sigmoid(x)
def _layernorm(x, axis=-1, eps=1e-5):
    m = x.mean(dim=axis, keepdim=True)
    v = x.var(dim=axis, keepdim=True, unbiased=False)
    return (x - m) / torch.sqrt(v + eps)
def _scatter_add(tgt, idx, src, axis=0):
    return tgt.clone().index_add_(axis, idx, src)
def _segment_sum(src, seg, n):
    out = torch.zeros((n,) + src.shape[1:], dtype=src.dtype)
    return out.index_add_(0, seg, src)
def _pad(x, pw):
    flat = tuple(v for pair in reversed(pw) for v in pair)
    return torch.nn.functional.pad(x, flat)

kernel_name = 'interleave_layers__sliding_local_dilated__softmax_full_mha__prompt'

def setup_inputs():

    _w = (lambda a: (lambda t: t.to(torch.bfloat16) if t.is_floating_point() else t)(torch.as_tensor(a)))
    def _A_setup():
        B, S, D = 1, 2048, 1024
        return {
            "x": _w((lambda *s: torch.randn(*s, dtype=torch.bfloat16) * 0.05)(B, S, D)),
            "wqkv": _w((lambda *s: torch.randn(*s, dtype=torch.bfloat16) * 0.05)(D, 3 * D)),
            "wo": _w((lambda *s: torch.randn(*s, dtype=torch.bfloat16) * 0.05)(D, D)),
        }
    _A_in = _A_setup()

    def _B_setup():
        B, S, D = 1, 2048, 1024
        return {
            "x": _w((lambda *s: torch.randn(*s, dtype=torch.bfloat16) * 0.05)(B, S, D)),
            "wqkv": _w((lambda *s: torch.randn(*s, dtype=torch.bfloat16) * 0.05)(D, 3 * D)),
            "wo": _w((lambda *s: torch.randn(*s, dtype=torch.bfloat16) * 0.05)(D, D)),
        }
    _B_in = _B_setup()

    return {
        "A_x": _A_in["x"],
        "A_wqkv": _A_in["wqkv"],
        "A_wo": _A_in["wo"],
        "B_x": _B_in["x"],
        "B_wqkv": _B_in["wqkv"],
        "B_wo": _B_in["wo"],
    }

def reference(A_x, A_wqkv, A_wo, B_x, B_wqkv, B_wo):
    def _A_ref(x, wqkv, wo):
        B, S, D = x.shape
        H = 32; Dh = D // H
        W, dil = 8, 2
        qkv = (lambda x, *d: x.permute(*d))((x @ wqkv).reshape(B, S, 3, H, Dh), 2, 0, 3, 1, 4)
        q, k, v = qkv[0], qkv[1], qkv[2]
        scale = Dh ** -0.5
        pos = torch.arange(S)
        off = torch.arange(W) * dil
        idx = pos[:, None] - off[None, :]
        mask = idx >= 0
        idx_c = torch.where(mask, idx, 0).reshape(-1)
        kg = k[:, :, idx_c, :].reshape(B, H, S, W, Dh)
        vg = v[:, :, idx_c, :].reshape(B, H, S, W, Dh)
        logits = torch.einsum("bhsd,bhswd->bhsw", q, kg) * scale
        logits = torch.where(mask[None, None, :, :], logits, -1e9)
        attn = _softmax(logits, axis=-1)
        o = torch.einsum("bhsw,bhswd->bhsd", attn, vg)
        return (lambda x, *d: x.permute(*d))(o, 0, 2, 1, 3).reshape(B, S, D) @ wo

    def _B_ref(x, wqkv, wo):
        B, S, D = x.shape
        H = 32; Dh = D // H
        qkv = (lambda x, *d: x.permute(*d))((x @ wqkv).reshape(B, S, 3, H, Dh), 2, 0, 3, 1, 4)
        q, k, v = qkv[0], qkv[1], qkv[2]
        scale = Dh ** -0.5
        scores = torch.einsum("bhqd,bhkd->bhqk", q, k) * scale
        p = _softmax(scores, axis=-1)
        o = torch.einsum("bhqk,bhkd->bhqd", p, v)
        return (lambda x, *d: x.permute(*d))(o, 0, 2, 1, 3).reshape(B, S, D) @ wo

    x = A_x
    x = x + _A_ref(_layernorm(x, axis=-1), A_wqkv, A_wo)
    x = x + _B_ref(_layernorm(x, axis=-1), B_wqkv, B_wo)
    x = x + _A_ref(_layernorm(x, axis=-1), A_wqkv, A_wo)
    x = x + _B_ref(_layernorm(x, axis=-1), B_wqkv, B_wo)
    return x
```

```python
import re

def vr(a, n=1):
    return f"v{a}" if n == 1 else f"v[{a}:{a+n-1}]"
def sr(a, n=1):
    return f"s{a}" if n == 1 else f"s[{a}:{a+n-1}]"

_REG = re.compile(r'\b([vsa])(\d+)\b|\b([vsa])\[(\d+):(\d+)\]')
def regs_in(txt):
    out = set()
    for m in _REG.finditer(txt):
        if m.group(1):
            out.add((m.group(1), int(m.group(2))))
        else:
            for i in range(int(m.group(4)), int(m.group(5)) + 1):
                out.add((m.group(3), i))
    if re.search(r'\bvcc\b', txt): out.add(('s', 'vcc'))
    if re.search(r'\bm0\b', txt): out.add(('s', 'm0'))
    if re.search(r'\bexec\b', txt): out.add(('s', 'exec'))
    return out

TRANS = ('v_exp_f32', 'v_log_f32', 'v_rcp_f32', 'v_rsq_f32', 'v_sqrt_f32', 'v_sin_f32', 'v_cos_f32')

class Inst:
    __slots__ = ('text', 'op', 'kind', 'reads', 'writes', 'srcc', 'passes', 'label', 'dpp', 'tag')
    def __init__(self, text):
        self.text = text
        self.label = None
        self.tag = None
        t = text.split(';')[0].strip()
        self.reads = set(); self.writes = set(); self.srcc = set(); self.passes = 0; self.dpp = False
        if t.endswith(':') and ' ' not in t:
            self.label = t[:-1]; self.op = None; self.kind = 'label'; return
        if t == '' or t.startswith('.'):
            self.op = None; self.kind = 'dir'; return
        parts = t.split(None, 1)
        op = parts[0]; self.op = op
        args = parts[1] if len(parts) > 1 else ''
        ops = [a.strip() for a in re.split(r',(?![^\[]*\])', args)] if args else []
        if op.startswith('v_mfma'):
            self.kind = 'mfma'
            self.passes = 8 if '32x32x16' in op else 4 if '16x16x32' in op else 16
            self.writes = regs_in(ops[0])
            self.reads = regs_in(ops[1]) | regs_in(ops[2]) | regs_in(ops[3])
            self.srcc = regs_in(ops[3])
        elif op.startswith('v_smfmac'):
            self.kind = 'mfma'
            self.passes = 8
            self.writes = regs_in(ops[0])
            self.reads = regs_in(ops[0]) | regs_in(ops[1]) | regs_in(ops[2]) | regs_in(ops[3].split()[0])
            self.srcc = regs_in(ops[0])
        elif op.startswith('v_'):
            self.kind = 'trans' if op.replace('_e32', '').replace('_e64', '') in TRANS else 'valu'
            self.dpp = ('quad_perm' in t or 'row_' in t or '_dpp' in op)
            if op.startswith('v_cmp'):
                self.writes = regs_in(ops[0]); self.reads = set().union(*[regs_in(o) for o in ops[1:]])
                if op.startswith('v_cmpx'): self.writes.add(('s', 'exec'))
            elif op.startswith('v_permlane') and 'swap' in op:
                self.writes = regs_in(ops[0]) | regs_in(ops[1]); self.reads = set(self.writes)
            elif op in ('v_add_co_u32', 'v_sub_co_u32', 'v_addc_co_u32', 'v_subb_co_u32'):
                self.writes = regs_in(ops[0]) | regs_in(ops[1]); self.reads = set().union(*[regs_in(o) for o in ops[2:]])
            else:
                self.writes = regs_in(ops[0]); self.reads = set().union(*[regs_in(o) for o in ops[1:]]) if len(ops) > 1 else set()
                if op.startswith('v_fmac') or op.startswith('v_dot2c') or 'UNUSED_PRESERVE' in t or op.startswith('v_writelane'):
                    self.reads |= self.writes
                if op.startswith('v_cndmask') and len(ops) == 3: self.reads.add(('s', 'vcc'))
        elif op.startswith('buffer_') or op.startswith('global_'):
            self.kind = 'vmem'
            is_lds = re.search(r'\blds\b', t) is not None
            if 'load' in op and not is_lds:
                self.writes = regs_in(ops[0]); self.reads = set().union(*[regs_in(o) for o in ops[1:]])
            else:
                self.reads = set().union(*[regs_in(o) for o in ops])
                if is_lds: self.reads.add(('s', 'm0'))
                if 'atomic' in op and re.search(r'\bsc0\b', t): self.writes = regs_in(ops[0])
        elif op.startswith('ds_'):
            self.kind = 'ds'
            if 'read' in op or 'bpermute' in op or 'swizzle' in op or 'permute' in op:
                self.writes = regs_in(ops[0]); self.reads = set().union(*[regs_in(o) for o in ops[1:]])
            else:
                self.reads = set().union(*[regs_in(o) for o in ops])
        elif op.startswith('s_'):
            self.kind = 'salu'
            if op in ('s_waitcnt', 's_barrier', 's_nop', 's_endpgm', 's_setprio', 's_sleep') or op.startswith('s_cbranch') or op == 's_branch':
                self.kind = 'sctl'
            elif op.startswith('s_cmp'):
                self.reads = set().union(*[regs_in(o) for o in ops])
            elif op.startswith('s_atomic'):
                self.kind = 'smem'
                self.writes = regs_in(ops[0]); self.reads = set().union(*[regs_in(o) for o in ops])
            elif op.startswith('s_load') or op.startswith('s_memtime') or op.startswith('s_memrealtime'):
                self.kind = 'smem'
                self.writes = regs_in(ops[0]); self.reads = set().union(*[regs_in(o) for o in ops[1:]]) if len(ops) > 1 else set()
            else:
                self.writes = regs_in(ops[0]); self.reads = set().union(*[regs_in(o) for o in ops[1:]]) if len(ops) > 1 else set()
                if 'saveexec' in op: self.writes.add(('s', 'exec')); self.reads.add(('s', 'exec'))
        else:
            raise ValueError("unknown instruction: " + text)

    def states(self):
        if self.kind in ('label', 'dir'): return 0
        if self.op == 's_nop': return int(self.text.split(';')[0].split()[1], 0) + 1
        return 1

def required(prod, cons):
    need = 0
    pk, ck = prod.kind, cons.kind
    pv = {r for r in prod.writes if r[0] in 'va'}
    ps = {r for r in prod.writes if r[0] == 's'}
    if pk in ('valu', 'trans'):
        if ck == 'mfma' and pv & cons.reads: need = max(need, 2)
        if pk == 'trans' and ck in ('valu', 'vmem', 'ds') and pv & cons.reads: need = max(need, 1)
        if ck in ('valu', 'trans'):
            if cons.dpp and pv & cons.reads: need = max(need, 2)
            if cons.op.startswith('v_permlane') and pv & cons.reads: need = max(need, 2)
            if cons.op.startswith('v_readfirstlane') or cons.op.startswith('v_readlane'):
                if pv & cons.reads: need = max(need, 1)
                if ps & cons.reads: need = max(need, 4)
            if ps & cons.reads: need = max(need, 2)
            if ('sdwa' in prod.text or 'op_sel' in prod.text) and pv & (cons.reads | cons.writes): need = max(need, 1)
            if ('s', 'exec') in ps:
                need = max(need, 5 if cons.dpp else 4 if cons.op.startswith(('v_read', 'v_write', 'v_permlane')) else 0)
        if ck == 'mfma' and ('s', 'exec') in ps: need = max(need, 4)
        if ck == 'vmem' and ps & cons.reads: need = max(need, 5)
        if ck in ('salu',) and ps & cons.reads: need = max(need, 0)
    if pk == 'mfma':
        P = prod.passes
        full = {2: 5, 4: 8, 8: 12, 16: 20}[P]
        ovl = {2: 4, 4: 6, 8: 10, 16: 18}[P]
        if ck == 'mfma':
            ab = cons.reads - cons.srcc
            if pv & ab: need = max(need, full)
            if pv & cons.srcc:
                if pv == cons.srcc and prod.passes == cons.passes: need = max(need, 2 if P == 2 else 0)
                else: need = max(need, ovl)
            elif pv & cons.writes:
                need = max(need, ovl)
        elif ck in ('valu', 'trans', 'vmem', 'ds'):
            if pv & (cons.reads | cons.writes): need = max(need, full)
        if ck in ('valu', 'trans') and prod.srcc & cons.writes:
            need = max(need, {2: 1, 4: 3, 8: 7, 16: 15}[P])
        if ck in ('vmem', 'ds') and prod.srcc & cons.writes:
            need = max(need, {2: 1, 4: 3, 8: 7, 16: 15}[P])
    if pk == 'salu' and ('s', 'm0') in ps and ck in ('vmem', 'ds') and ('s', 'm0') in cons.reads: need = max(need, 1)
    if pk == 'vmem' and 'store' in prod.op and ('x4' in prod.op or 'x3' in prod.op):
        data = {r for r in prod.reads if r[0] == 'v'}
        if ck in ('valu', 'trans') and data & cons.writes: need = max(need, 2)
        elif data & cons.writes: need = max(need, 1)
    return need

MAXLOOK = 24
class Prog:
    def __init__(self):
        self.insts = []
    def __call__(self, text, tag=None):
        for line in text.split('\n'):
            line = line.strip()
            if not line: continue
            i = Inst(line); i.tag = tag
            self.insts.append(i)
        return self
    def label(self, name): self(name + ':')
    def extend(self, other): self.insts.extend(other.insts)

def fix_hazards(insts, loops=()):
    out = []
    def pad_for(hist, cons):
        need_extra = 0
        dist = 0
        for p in reversed(hist):
            if dist >= MAXLOOK: break
            if p.kind in ('label', 'dir'): continue
            r = required(p, cons)
            if r > dist: need_extra = max(need_extra, r - dist)
            dist += p.states()
        return need_extra
    for ins in insts:
        if ins.kind not in ('label', 'dir'):
            n = pad_for(out, ins)
            while n > 0:
                k = min(n, 16)
                out.append(Inst(f"s_nop {k-1}")); n -= k
        out.append(ins)
    changed = True
    while changed:
        changed = False
        labels = {i.label: k for k, i in enumerate(out) if i.label}
        for k, ins in enumerate(out):
            if ins.op and (ins.op.startswith('s_cbranch') or ins.op == 's_branch'):
                tgt = ins.text.split(';')[0].split()[1]
                if tgt in labels:
                    t = labels[tgt]
                    hist = out[max(0, k - MAXLOOK * 2):k + 1]
                    h = list(hist)
                    j = t
                    steps = 0
                    while j < len(out) and steps < MAXLOOK:
                        c = out[j]
                        if c.kind not in ('label', 'dir'):
                            n = pad_for(h, c)
                            if n > 0:
                                out.insert(k, Inst(f"s_nop {min(n,16)-1}"))
                                changed = True
                                break
                            steps += c.states()
                            if c.op in ('s_branch', 's_endpgm'): break
                        h.append(c); j += 1
                    if changed: break
    return out

def render(insts):
    s = []
    for i in insts:
        if i.kind == 'label': s.append(i.text)
        elif i.kind == 'dir': s.append(i.text)
        else: s.append("    " + i.text)
    return "\n".join(s) + "\n"

def kernel_desc(name, vgpr, sgpr=102):
    if isinstance(vgpr, tuple):
        acc = (vgpr[0] + 3) // 4 * 4; vgpr = acc + vgpr[1]
    else:
        acc = min((vgpr + 3) // 4 * 4, 256)
    return f""".amdhsa_kernel {name}
  .amdhsa_next_free_vgpr {vgpr}
  .amdhsa_next_free_sgpr {sgpr}
  .amdhsa_accum_offset {acc}
  .amdhsa_group_segment_fixed_size 0
  .amdhsa_kernarg_size 72
  .amdhsa_user_sgpr_count 2
  .amdhsa_user_sgpr_kernarg_segment_ptr 1
  .amdhsa_system_sgpr_workgroup_id_x 1
.end_amdhsa_kernel
"""
```

```python
import sys, math, struct
from asmlib import *

MB = 1 << 20
XF = [0, 4 * MB, 8 * MB, 12 * MB]
QF, KF, VF = 16 * MB, 20 * MB, 24 * MB
OF = 40 * MB
ST = [56 * MB + i * 256 * 1024 for i in range(4)]
CS = 57 * MB
FL = 60 * MB
WSR = 72 * MB
sPH, sFIRST, sLAST, sLAY, sPRE, sSL0 = 96, 97, 98, 99, 100, 101
sNON = 60
FLC = FL + 11 * (1 << 19)
PD = 12 if False else 70
CN = 68 * MB
KNAME = 'interleave_layers__sliding_local_dilated__softmax_full_mha__prompt_kernel'
WO_WRAP = 147456
FSH = int(__import__('os').environ.get('FSH', '6'))
MEGA_LDS = 158720
DROP = 0x28000
WS_SIZE = 268435456

KA_X, KA_WQKV_A, KA_WO_A, KA_WQKV_B, KA_WO_B, KA_OUT, KA_DBG, KA_WS = 0, 8, 16, 32, 40, 48, 56, 64

STAMPS = False
import os
STFLAG = os.environ.get("STFLAG", " sc1")
ROWMAP = os.environ.get("ROWMAP", "0") == "1"
SIDE = os.environ.get("SIDE", "0") == "1"
LDF = os.environ.get("LDF", " sc1")
STX = os.environ.get("STX", STFLAG)
STAMP_BASE = 58 * MB
def stamp(e, i):
    if STAMPS:
        e(f"s_memtime s[{64+2*i}:{65+2*i}]")
        e(f"s_memrealtime s[{80+2*i}:{81+2*i}]")
        e("s_waitcnt lgkmcnt(0)")
def stamp_out(p, n, kidx, sws, vtmp, swave):
    if STAMPS:
        stamp(p, 3)
        n = 8
        p(f"s_lshl_b32 s62, s2, 3")
        p(f"s_add_u32 s62, s62, s{swave}")
        p(f"s_lshl_b32 s62, s62, 6")
        p(f"s_lshl_b32 s63, s{sPH}, 17")
        p("s_add_u32 s62, s62, s63")
        p(f"s_add_u32 s62, s62, {STAMP_BASE}")
        p(f"v_mov_b32 v{vtmp+1}, 0")
        for i in range(n):
            p(f"v_mov_b32 v{vtmp}, s{64+2*i}")
            p(f"buffer_store_dword v{vtmp}, v{vtmp+1}, s[{sws}:{sws+3}], s62 offen offset:{4*i}")
            p(f"v_mov_b32 v{vtmp+2}, s{80+2*i}")
            p(f"buffer_store_dword v{vtmp+2}, v{vtmp+1}, s[{sws}:{sws+3}], s62 offen offset:{32+4*i}")
def f32bits(x): return struct.unpack('<I', struct.pack('<f', x))[0]
QSCALE = (32 ** -0.5) * math.log2(math.e)

def srd(p, d, base_lo, base_hi, size):
    p(f"s_mov_b32 s{d}, s{base_lo}")
    p(f"s_mov_b32 s{d+1}, s{base_hi}")
    p(f"s_mov_b32 s{d+2}, {size}")
    p(f"s_mov_b32 s{d+3}, 0x00020000")

def srd_off(p, d, base_lo, base_hi, off, size):
    p(f"s_add_u32 s{d}, s{base_lo}, {off}")
    p(f"s_addc_u32 s{d+1}, s{base_hi}, 0")
    p(f"s_mov_b32 s{d+2}, {size}")
    p(f"s_mov_b32 s{d+3}, 0x00020000")

def poll(e, name, vaddr, vtmp, sws, stmp, base=None):
    if base is None:
        e(f"s_lshl_b32 s{stmp}, s{sPH}, 19")
        e(f"s_add_u32 s{stmp}, s{stmp}, {FL - (1 << 19)}")
    else:
        e(f"s_mov_b32 s{stmp}, {base}")
    e(f"s_mov_b32 s{stmp+1}, 0x40000")
    e(f"{name}_poll:")
    e(f"buffer_load_dwordx2 v[208:209], v{vaddr}, s[{sws}:{sws+3}], s{stmp} offen sc1")
    e("s_waitcnt vmcnt(0)")
    e(f"v_cmp_ne_u64 vcc, s[{sNON}:{sNON+1}], v[208:209]")
    e("s_nop 4")
    e(f"s_cbranch_vccz {name}_ready")
    e(f"s_sub_u32 s{stmp+1}, s{stmp+1}, 1")
    e(f"s_cmp_lg_u32 s{stmp+1}, 0")
    e(f"s_cbranch_scc1 {name}_poll")
    e(f"{name}_ready:")
    if not name.endswith("2"): stamp(e, 7)

def cpoll(e, name, idx, expect, sws, stmp):
    if isinstance(idx, tuple): lst = [(idx[0], i) for i in range(idx[1])]
    else: lst = [(r, 0) for r in idx]
    e(f"s_lshl_b32 s{stmp}, s{sPH}, 15")
    e(f"s_add_u32 s{stmp}, s{stmp}, {CN - (1 << 15)}")
    e(f"s_add_u32 s54, s{sws}, s{stmp}")
    e(f"s_addc_u32 s55, s{sws+1}, 0")
    e(f"s_mov_b32 s56, 0x40000")
    regs = sorted(set(r for r, _ in lst))
    for n, r in enumerate(regs): e(f"s_lshl_b32 s{57+n}, s{r}, 8")
    e(f"{name}_poll:")
    for n, (r, i) in enumerate(lst):
        e(f"s_mov_b32 s{PD+n}, 0")
    for n, (r, i) in enumerate(lst):
        e(f"s_atomic_add s{PD+n}, s[54:55], s{57+regs.index(r)} offset:{256*i} glc")
    e("s_waitcnt lgkmcnt(0)")
    for n in range(1, len(lst)): e(f"s_and_b32 s{PD}, s{PD}, s{PD+n}")
    e(f"s_cmp_eq_u32 s{PD}, {expect}")
    e(f"s_cbranch_scc1 {name}_ready")
    e(f"s_sub_u32 s56, s56, 1")
    e(f"s_cmp_lg_u32 s56, 0")
    e(f"s_cbranch_scc1 {name}_poll")
    e(f"{name}_ready:")
    if not name.endswith("2"): stamp(e, 7)

def cpublish(p, sIdx, sws, stmp):
    p(f"s_cmp_eq_u32 s{sPH}, s{sLAST}")
    p("s_cbranch_scc1 mega_exit")
    p(f"s_lshl_b32 s{stmp}, s{sPH}, 15")
    p(f"s_lshl_b32 s{stmp+1}, s{sIdx}, 8")
    p(f"s_add_u32 s{stmp}, s{stmp}, s{stmp+1}")
    p(f"s_add_u32 s{stmp}, s{stmp}, {CN}")
    p(f"s_add_u32 s54, s{sws}, s{stmp}")
    p(f"s_addc_u32 s55, s{sws+1}, 0")
    p(f"s_mov_b32 s59, 1")
    p("s_waitcnt vmcnt(0)")
    p(f"s_atomic_add s59, s[54:55], 0")
    p(f"s_branch mega_next2")

def publish(p, sRr, sJ, vtmp, sws, stmp, tgt='mega_next'):
    p(f"s_cmp_eq_u32 s{sPH}, s{sLAST}")
    p("s_cbranch_scc1 mega_exit")
    p(f"s_lshl_b32 s{stmp}, s{sPH}, 19")
    p(f"s_lshl_b32 s{stmp+1}, s{sRr}, 13")
    p(f"s_add_u32 s{stmp}, s{stmp}, s{stmp+1}")
    p(f"s_lshl_b32 s{stmp+1}, s{sJ}, {FSH}")
    p(f"s_add_u32 s{stmp}, s{stmp}, s{stmp+1}")
    p(f"s_add_u32 s{stmp}, s{stmp}, {FL}")
    p(f"v_mov_b32 v210, 0")
    p(f"v_mov_b32 v208, s{sNON}")
    p(f"v_mov_b32 v209, s{sNON+1}")
    p("s_waitcnt vmcnt(0)")
    p(f"buffer_store_dwordx2 v[208:209], v210, s[{sws}:{sws+3}], s{stmp} offen sc1")
    p(f"s_branch {tgt}")

def wo_lane(p, vdst, vL, t, stmp):
    t0, t1, t2, t3 = t, t + 1, t + 2, t + 3
    p(f"s_bfe_u32 s{stmp}, s2, 0x10002")
    p(f"s_lshl_b32 s{stmp}, s{stmp}, 3")
    p(f"s_lshr_b32 s{stmp+1}, s2, 5")
    p(f"s_add_u32 s{stmp}, s{stmp}, s{stmp+1}")
    p(f"s_lshl_b32 s{stmp}, s{stmp}, 7")
    p(f"v_lshrrev_b32 v{t0}, 3, v{vL}")
    p(f"v_lshlrev_b32 v{t1}, 11, v{t0}")
    p(f"v_lshrrev_b32 v{t2}, 2, v{vL}")
    p(f"v_lshrrev_b32 v{t3}, 4, v{vL}")
    p(f"v_xor_b32 v{t2}, v{t2}, v{t3}")
    p(f"v_and_b32 v{t2}, 1, v{t2}")
    p(f"v_lshl_add_u32 v{t1}, v{t2}, 6, v{t1}")
    p(f"v_and_b32 v{t2}, 3, v{vL}")
    p(f"v_lshl_add_u32 v{t1}, v{t2}, 4, v{t1}")
    p(f"v_add_u32 v{vdst}, s{stmp}, v{t1}")

def wo_load_stages(p, label, vD, srdw, sW4, sSt, end, stmp):
    p.label(label)
    p(f"s_cmp_ge_u32 s{sSt}, {end}")
    p(f"s_cbranch_scc1 {label}_end")
    p(f"s_lshl_b32 s{stmp}, s{sSt}, 14")
    p(f"s_add_u32 s{stmp}, s{stmp}, s{sSL0}")
    p(f"s_sub_u32 s{stmp+1}, s{stmp}, {WO_WRAP}")
    p(f"s_cmp_ge_u32 s{stmp}, {WO_WRAP}")
    p(f"s_cselect_b32 s{stmp}, s{stmp+1}, s{stmp}")
    p(f"s_lshl_b32 s{stmp+1}, s{sW4}, 12")
    p(f"s_add_u32 m0, s{stmp}, s{stmp+1}")
    p(f"s_lshl_b32 s{stmp}, s{sSt}, 18")
    p(f"s_lshl_b32 s{stmp+1}, s{sW4}, 16")
    p(f"s_add_u32 s{stmp}, s{stmp}, s{stmp+1}")
    for j in range(4):
        p(f"buffer_load_dwordx4 v{vD+j}, s[{srdw}:{srdw+3}], s{stmp} offen offset:{j*1024} lds")
    p(f"s_add_u32 s{sSt}, s{sSt}, 1")
    p(f"s_branch {label}")
    p.label(f"{label}_end")

def idle_barriers(p, n):
    for i in range(n): p("s_barrier")
    p(f"s_cmp_eq_u32 s{sPH}, s{sLAST}")
    p("s_cbranch_scc1 mega_exit")
    p("s_branch mega_next")

def gen_dispatch():
    p = Prog()
    p(".p2align 8")
    p.label(KNAME)
    p(f"s_mov_b32 s{sPH}, 0")
    p(f"s_mov_b32 s{sLAST}, 10")
    p(f"s_mov_b32 s{sPRE}, 0")
    p(f"s_mov_b32 s{sSL0}, 0")
    p("s_cmp_ge_u32 s2, 256")
    p("s_cbranch_scc1 mega_exit")
    p("s_branch prep_body")
    p.label("mega_next")
    p(f"s_add_u32 s{sPH}, s{sPH}, 1")
    p("s_waitcnt lgkmcnt(0)")
    p("s_branch mega_next3")
    p.label("mega_next2")
    p(f"s_add_u32 s{sPH}, s{sPH}, 1")
    p.label("mega_next3")
    p("s_barrier")
    p(f"s_mov_b32 s{sLAY}, 0")
    for thr in (3, 6, 8):
        p(f"s_cmp_ge_u32 s{sPH}, {thr}")
        p(f"s_addc_u32 s{sLAY}, s{sLAY}, 0")
    kinds = ["qkvA", "wo", "qkvB", "attn", "wo", "qkvA", "wo", "qkvB", "attn", "woF"]
    for ph, k in enumerate(kinds):
        p(f"s_cmp_eq_u32 s{sPH}, {ph+1}")
        p(f"s_cbranch_scc1 {k}_body")
    p.label("mega_exit")
    p("s_endpgm")
    return p

def gen_prep():
    p = Prog()
    p(".p2align 6")
    p.label("prep_body")
    stamp(p, 0)
    p(f"s_load_dwordx2 s[4:5], s[0:1], {KA_X}")
    p(f"s_load_dwordx2 s[6:7], s[0:1], {KA_WQKV_A}")
    p(f"s_load_dwordx2 s[8:9], s[0:1], {KA_WQKV_B}")
    p(f"s_load_dwordx4 s[40:43], s[0:1], {KA_DBG}")
    p(f"s_load_dwordx2 s[44:45], s[0:1], {KA_WO_A}")
    p(f"s_load_dwordx2 s[46:47], s[0:1], {KA_WO_B}")
    p(f"s_memrealtime s[{sNON}:{sNON+1}]")
    p("v_and_b32 v1, 63, v0")
    p("v_lshrrev_b32 v2, 6, v0")
    p("v_readfirstlane_b32 s30, v2")
    p("v_mov_b32 v210, 0")
    p("s_waitcnt lgkmcnt(0)")
    srd(p, 16, 42, 43, WSR)
    srd(p, 32, 40, 41, 256)
    p("s_lshl_b32 s3, s2, 3")
    p("s_add_u32 s3, s3, s30")
    p("s_cmp_lg_u32 s3, 7")
    p("s_cbranch_scc1 prep_nonon")
    p("v_lshrrev_b32 v211, 3, v1")
    p("v_lshlrev_b32 v211, 8, v211")
    p("v_and_b32 v212, 7, v1")
    p("v_lshl_add_u32 v211, v212, 4, v211")
    for i in range(4): p(f"v_mov_b32 v{212+i}, 0")
    p(f"s_mov_b32 s3, {CN}")
    for i in range(8):
        p("buffer_store_dwordx4 v[212:215], v211, s[16:19], s3 offen sc1")
        p("s_add_u32 s3, s3, 2048")
    p(f"s_or_b32 s{sNON}, s{sNON}, 1")
    p(f"v_mov_b32 v208, s{sNON}")
    p(f"v_mov_b32 v209, s{sNON+1}")
    p("s_waitcnt vmcnt(0)")
    p("buffer_store_dwordx2 v[208:209], v210, s[32:35], 0 offen sc1")
    p("v_lshlrev_b32 v211, 8, v1")
    p(f"s_mov_b32 s3, {CN + 32768}")
    for i in range(20):
        p("buffer_store_dword v210, v211, s[16:19], s3 offen sc1")
        p("s_add_u32 s3, s3, 16384")
    p(f"s_mov_b32 s3, {FLC + 768*64}")
    p("s_waitcnt vmcnt(0)")
    p("buffer_store_dwordx2 v[208:209], v210, s[16:19], s3 offen sc1")
    p.label("prep_nonon")
    p("s_cmp_ge_u32 s30, 4")
    p("s_cbranch_scc1 prep_side")
    srd(p, 12, 4, 5, 4 * MB)
    p("s_lshr_b32 s21, s2, 2")
    p("s_and_b32 s22, s2, 3")
    p("s_lshl_b32 s22, s22, 2")
    p("s_add_u32 s22, s22, s30")
    p("v_lshrrev_b32 v3, 3, v1")
    p("v_and_b32 v4, 7, v1")
    p("v_lshlrev_b32 v5, 11, v3")
    p("v_lshl_add_u32 v5, v4, 4, v5")
    p("s_lshl_b32 s3, s21, 16")
    p("s_lshl_b32 s23, s22, 7")
    p("s_add_u32 s3, s3, s23")
    for i in range(4):
        p(f"buffer_load_dwordx4 v[{8+4*i}:{11+4*i}], v5, s[12:15], s3 offen")
        p("s_add_u32 s3, s3, 16384")
    p("v_lshrrev_b32 v6, 1, v4")
    p("v_lshl_add_u32 v6, v2, 2, v6")
    p("v_lshlrev_b32 v6, 10, v6")
    p("v_lshl_add_u32 v6, v3, 4, v6")
    p("v_and_b32 v7, 1, v4")
    p("v_lshl_add_u32 v6, v7, 3, v6")
    p("v_lshlrev_b32 v24, 4, v3")
    p("s_lshl_b32 s24, s21, 12")
    p("s_bfe_u32 s23, s22, 0x20001")
    p("s_lshl_b32 s23, s23, 10")
    p("s_add_u32 s24, s24, s23")
    p("s_lshr_b32 s23, s22, 3")
    p("s_lshl_b32 s23, s23, 9")
    p("s_add_u32 s24, s24, s23")
    p("s_and_b32 s23, s22, 1")
    p("s_lshl_b32 s23, s23, 3")
    p("s_add_u32 s24, s24, s23")
    p(f"s_add_u32 s24, s24, {ST[0]}")
    p("v_mov_b32 v25, 0x3f803f80")
    for i in range(4):
        b = 8 + 4 * i; a = 28 + 2 * i
        p(f"s_waitcnt vmcnt({3})")
        p(f"ds_write_b64 v6, v[{b}:{b+1}] offset:{128*i}")
        p(f"ds_write_b64 v6, v[{b+2}:{b+3}] offset:{512+128*i}")
        p(f"v_mov_b32 v{a}, 0")
        p(f"v_mov_b32 v{a+1}, 0")
        for j in range(4):
            p(f"v_dot2_f32_bf16 v{a}, v{b+j}, v25, v{a}")
            p(f"v_dot2_f32_bf16 v{a+1}, v{b+j}, v{b+j}, v{a+1}")
        p("s_nop 2")
        for q in ("quad_perm:[1,0,3,2]", "quad_perm:[2,3,0,1]", "row_half_mirror"):
            p(f"v_add_f32_dpp v{a}, v{a}, v{a} {q} row_mask:0xf bank_mask:0xf")
            p(f"v_add_f32_dpp v{a+1}, v{a+1}, v{a+1} {q} row_mask:0xf bank_mask:0xf")
        p(f"buffer_store_dwordx2 v[{a}:{a+1}], v24, s[16:19], s24 offen offset:{128*i}{STFLAG}")
    p("v_lshlrev_b32 v5, 4, v1")
    p("v_lshl_add_u32 v7, v2, 12, v5")
    p("s_waitcnt lgkmcnt(0)")
    for i in range(4):
        p(f"ds_read_b128 v[{8+4*i}:{11+4*i}], v7 offset:{1024*i}")
    p("buffer_load_dwordx2 v[208:209], v210, s[32:35], 0 offen sc1")
    p("s_lshl_b32 s3, s21, 16")
    p("s_lshl_b32 s23, s22, 12")
    p("s_add_u32 s3, s3, s23")
    for i in range(4):
        p(f"s_waitcnt lgkmcnt({3-i})")
        p(f"buffer_store_dwordx4 v[{8+4*i}:{11+4*i}], v5, s[16:19], s3 offen offset:{1024*i}{STFLAG}")
    def get_nonce(lbl, issued=False):
        p("s_mov_b32 s37, 0x40000")
        if issued: p(f"s_branch {lbl}_w")
        p.label(lbl)
        p("buffer_load_dwordx2 v[208:209], v210, s[32:35], 0 offen sc1")
        p.label(f"{lbl}_w")
        p("s_waitcnt vmcnt(0)")
        p(f"v_readfirstlane_b32 s{sNON}, v208")
        p(f"v_readfirstlane_b32 s{sNON+1}, v209")
        p("s_sub_u32 s37, s37, 1")
        p("s_cmp_eq_u32 s37, 0")
        p(f"s_cbranch_scc1 {lbl}_ok")
        p(f"s_cmp_eq_u32 s{sNON}, 0")
        p(f"s_cbranch_scc1 {lbl}")
        p.label(f"{lbl}_ok")
    get_nonce("prep_n1", True)
    stamp(p, 1); stamp(p, 2); stamp(p, 7)
    stamp_out(p, 4, 0, 16, 40, 30)
    cpublish(p, 21, 16, 36)
    p.label("prep_side")
    p("s_cmp_eq_u32 s30, 7")
    p("s_cbranch_scc1 prep_pf")
    p("s_sub_u32 s3, s30, 4")
    p("s_lshl_b32 s3, s3, 8")
    p("s_add_u32 s27, s3, s2")
    p("s_cmp_ge_u32 s27, 384")
    p("s_cselect_b32 s12, s8, s6")
    p("s_cselect_b32 s13, s9, s7")
    p("s_cselect_b32 s21, 1, 0")
    p("s_cselect_b32 s22, 384, 0")
    p("s_sub_u32 s3, s27, s22")
    p(f"s_mov_b32 s14, {6*MB}")
    p("s_mov_b32 s15, 0x00020000")
    p("s_and_b32 s22, s3, 15")
    p("s_lshr_b32 s23, s3, 4")
    p("v_lshrrev_b32 v3, 4, v1")
    p("v_mul_u32_u24 v3, 6144, v3")
    p("v_and_b32 v4, 15, v1")
    p("v_lshl_add_u32 v3, v4, 4, v3")
    p("s_mul_i32 s24, s22, 393216")
    p("s_lshl_b32 s25, s23, 8")
    p("s_add_u32 s24, s24, s25")
    for i in range(16):
        p(f"buffer_load_dwordx4 v[{16+4*i}:{19+4*i}], v3, s[12:15], s24 offen")
        p("s_add_u32 s24, s24, 24576")
    for i in range(8): p(f"v_mov_b32 v{8+i}, 0")
    p("s_mov_b32 s20, 0xffff0000")
    for i in range(16):
        p(f"s_waitcnt vmcnt({15-i})")
        for j in range(4):
            p(f"v_lshlrev_b32 v6, 16, v{16+4*i+j}")
            p(f"v_and_b32 v7, s20, v{16+4*i+j}")
            p(f"v_pk_add_f32 v[{8+2*j}:{9+2*j}], v[{8+2*j}:{9+2*j}], v[6:7]")
    p("buffer_load_dwordx2 v[208:209], v210, s[32:35], 0 offen sc1")
    for sw in ("v_permlane32_swap_b32", "v_permlane16_swap_b32"):
        for i in range(8): p(f"v_mov_b32 v{16+i}, v{8+i}")
        for i in range(8): p(f"{sw} v{8+i}, v{16+i}")
        for i in range(8): p(f"v_add_f32 v{8+i}, v{8+i}, v{16+i}")
    p("s_lshl_b32 s24, s21, 2")
    p("s_lshr_b32 s25, s22, 2")
    p("s_add_u32 s24, s24, s25")
    p("s_mul_i32 s24, s24, 49152")
    p("s_lshl_b32 s25, s23, 11")
    p("s_add_u32 s24, s24, s25")
    p("s_and_b32 s25, s22, 3")
    p("s_lshl_b32 s25, s25, 2")
    p("s_add_u32 s24, s24, s25")
    p(f"s_add_u32 s24, s24, {CS}")
    p("v_lshrrev_b32 v5, 4, v1")
    for g in range(1, 4):
        p(f"v_cmp_eq_u32 vcc, {g}, v5")
        p(f"v_cndmask_b32 v8, v8, v{8+2*g}, vcc")
        p(f"v_cndmask_b32 v9, v9, v{9+2*g}, vcc")
    p("v_lshlrev_b32 v5, 5, v5")
    p("v_lshl_add_u32 v5, v4, 7, v5")
    p("buffer_store_dword v8, v5, s[16:19], s24 offen sc1")
    p("buffer_store_dword v9, v5, s[16:19], s24 offen offset:16 sc1")
    get_nonce("prep_n2", True)
    p("s_lshl_b32 s24, s27, 6")
    p(f"s_add_u32 s24, s24, {FLC}")
    p("buffer_store_dwordx2 v[208:209], v210, s[16:19], s24 offen sc1")
    p("s_branch mega_next")
    p.label("prep_pf")
    PFV = os.environ.get("PFV", "none")
    if PFV == "ab":
        p("s_and_b32 s8, s2, 127")
        p("s_lshl_b32 s8, s8, 14")
        p("v_lshlrev_b32 v3, 4, v1")
        p("s_cmp_ge_u32 s2, 128")
        p("s_cselect_b32 s12, s46, s44")
        p("s_cselect_b32 s13, s47, s45")
        p(f"s_mov_b32 s14, {2*MB}")
        p("s_mov_b32 s15, 0x00020000")
        for i in range(16):
            p(f"buffer_load_dwordx4 v[{8+4*i}:{11+4*i}], v3, s[12:15], s8 offen")
            p("s_add_u32 s8, s8, 1024")
    elif PFV == "a":
        p("s_lshl_b32 s8, s2, 13")
        p("v_lshlrev_b32 v3, 4, v1")
        srd(p, 12, 44, 45, 2 * MB)
        for i in range(8):
            p(f"buffer_load_dwordx4 v[{8+4*i}:{11+4*i}], v3, s[12:15], s8 offen")
            p("s_add_u32 s8, s8, 1024")
    get_nonce("prep_n3")
    p("s_branch mega_next")
    return p, 0

import os
ABL = os.environ.get("ABL", "")
SKIP15 = os.environ.get("SKIP15", "1") == "1"
class Pipe:
    def __init__(self):
        self.items = []
        self.vm = []
        self.lg = []
        self.it = -1
    def emit(self, text):
        if self.it >= 0:
            if 'm' in ABL and text.startswith('v_mfma'): return
            if 'g' in ABL and text.startswith('buffer_load'): return
            if 'r' in ABL and text.startswith('ds_read'): return
            if 'a' in ABL and text.startswith('buffer_load') and not text.endswith('lds'): return
            if 'd' in ABL and text.startswith('buffer_load') and text.endswith('lds'): return
            if 'b' in ABL and text.startswith('s_barrier'): return
            if 'e' in ABL and text.startswith('v_exp'): return
            if 'H' in ABL and text.startswith('ds_read') and (' v15 ' in text or ' v17 ' in text): return
            if 'h' in ABL and text.startswith('v_mfma_f32_16x16x32_bf16 v[128') : return
            if 'h' in ABL and text.startswith('v_mfma_f32_16x16x32_bf16 v[132') : return
            if 'S' in ABL and text.startswith('v_mfma_f32_16x16'): return
            if 'P' in ABL and text.startswith('v_mfma_f32_32x32x16_bf16 v[144') : return
            if 'P' in ABL and text.startswith('v_mfma_f32_32x32x16_bf16 v[160') : return
            if 'c' in ABL and text.startswith('v_cvt'): return
        self.items.append((self.it, 'i', text))
    def vmem(self, text, tag): self.vm.append(tag); self.emit(text)
    def lds(self, text, tag): self.lg.append(tag); self.emit(text)
    def wait(self, vm=None, lg=None):
        nv = nl = None
        if vm is not None:
            idx = max(i for i, t in enumerate(self.vm) if t in vm) if any(t in vm for t in self.vm) else None
            nv = len(self.vm) - 1 - idx if idx is not None else 63
        if lg is not None:
            idx = max(i for i, t in enumerate(self.lg) if t in lg) if any(t in lg for t in self.lg) else None
            nl = len(self.lg) - 1 - idx if idx is not None else 15
        self.items.append((self.it, 'w', (nv, nl)))
    def fold(self, p, niter, label, tail):
        def wtxt(nv, nl):
            s = "s_waitcnt"
            if nv is not None: s += f" vmcnt({min(nv,63)})"
            if nl is not None: s += f" lgkmcnt({min(nl,15)})"
            return s
        for it, k, pl in self.items:
            if it == -1: p(pl if k == 'i' else wtxt(*pl))
        bodies = [[(k, pl) for it, k, pl in self.items if it == i] for i in range(niter)]
        L = len(bodies[0])
        assert all(len(b) == L for b in bodies), [len(b) for b in bodies]
        p.label(label)
        for j in range(L):
            k = bodies[0][j][0]
            if k == 'i':
                assert all(b[j] == bodies[0][j] for b in bodies), (j, [b[j] for b in bodies][:3])
                p(bodies[0][j][1])
            else:
                nv = [b[j][1][0] for b in bodies]; nl = [b[j][1][1] for b in bodies]
                v_ = None if nv[0] is None else min(nv); l_ = None if nl[0] is None else min(nl)
                if l_ is not None and l_ >= 16 and SKIP15: l_ = None
                if v_ is not None or l_ is not None: p(wtxt(v_, l_))
        p(tail)

def qkv_stage(A): return 28672 if A else 24576
def qkv_misc(A): return 4 * qkv_stage(A)
def qkv_lds(A): return qkv_misc(A) + (8704 + 5 * 6144 + 2048 if A else 2048 + 512)

def gen_qkv(mode):
    A = mode == 'A'
    STG = qkv_stage(A); MISC = qkv_misc(A); PAIR = 2 * STG
    MEAN_O, RSTD_O = 1024, 1664
    XCH = MISC + 2560
    p = Prog()
    name = f"qkv{mode}"
    p(".p2align 6")
    p.label(f"{name}_body")
    p(f"s_lshl_b32 s20, s{sLAY}, 22")
    p(f"s_lshl_b32 s21, s{sLAY}, 18")
    p(f"s_add_u32 s21, s21, {ST[0]}")
    stamp(p, 0)
    p(f"s_load_dwordx2 s[4:5], s[0:1], {KA_WQKV_A if A else KA_WQKV_B}")
    p(f"s_load_dwordx2 s[6:7], s[0:1], {KA_WS}")
    vL, vW, vH, vI = 1, 2, 3, 4
    vAoff, vA16 = 5, 6
    vRd = [7, 8, 9, 10]; vRb = [11, 12, 13, 14]
    vRdH, vRbH, vRdA, vRbA = 15, 16, 17, 18
    vG2 = 19
    vHoff = 31
    vT = 20
    ACC, HACC, BS, HB, HF, TMP, NVG = 32, 128, 136, 184, 192, 200, 224
    vDma = 7
    sW, sRT, sCT, sR = 8, 9, 10, 11
    SA, SH, SWq, SWS = 12, 16, 24, 28
    sA0, sPair, sM, sCnt, sWb, sWr, sH0 = 32, 38, 39, 40, 41, 42, 43
    t0, t1, t2, t3 = vT, vT + 1, vT + 2, vT + 3
    p(f"v_and_b32 v{vL}, 63, v0")
    p(f"v_lshrrev_b32 v{vW}, 6, v0")
    p(f"v_lshlrev_b32 v{vAoff}, 4, v{vL}")
    p(f"v_readfirstlane_b32 s{sW}, v{vW}")
    p("s_and_b32 s3, s2, 1")
    p("s_lshl_b32 s3, s3, 3")
    p("s_bfe_u32 s11, s2, 0x30003")
    p(f"s_add_u32 s{sRT}, s3, s11")
    p("s_bfe_u32 s3, s2, 0x20001")
    p("s_lshl_b32 s3, s3, 2")
    p("s_lshr_b32 s11, s2, 6")
    p(f"s_add_u32 s{sCT}, s3, s11")
    p(f"s_lshl_b32 s3, s{sRT}, 2")
    p(f"s_add_u32 s{sR}, s3, s{sW}")
    p(f"s_lshl_b32 s22, s{sR}, 16")
    p("s_add_u32 s22, s22, s20")
    p("s_sub_u32 s44, s3, 1")
    p("s_max_i32 s44, s44, 0")
    p("s_lshl_b32 s23, s44, 16")
    p("s_add_u32 s23, s23, s20")
    p(f"v_lshrrev_b32 v{vH}, 5, v{vL}")
    p(f"v_and_b32 v{vI}, 15, v0")
    p(f"v_bfe_u32 v{vG2}, v{vL}, 4, 1")
    p(f"v_lshl_add_u32 v{vA16}, v{vG2}, 5, v{vI}")
    p(f"v_lshlrev_b32 v{vA16}, 4, v{vA16}")
    p(f"v_lshl_add_u32 v{vA16}, v{vH}, 10, v{vA16}")
    p("s_waitcnt lgkmcnt(0)")
    stamp(p, 4)
    srd(p, SWq, 4, 5, 6 * MB)
    srd_off(p, SA, 6, 7, "s22", 65536)
    if A: srd_off(p, SH, 6, 7, "s23", 65536)
    srd(p, SWS, 6, 7, WSR)
    p(f"s_cmp_eq_u32 s{sW}, 4")
    p(f"s_cbranch_scc1 {name}_helper")
    p(f"s_cmp_gt_u32 s{sW}, 4")
    p(f"s_cbranch_scc1 {name}_loader")
    D = 3
    pipe = Pipe()
    E = pipe.emit
    def a_load(u, rh):
        uu = u - D
        dst = f"a[{8*(u%4)+4*rh}:{8*(u%4)+4*rh+3}]"
        if uu < 0:
            so = "0" if u < 2 else f"s{sCnt}"
            pipe.vmem(f"buffer_load_dwordx4 {dst}, v{vA16}, s[{SA}:{SA+3}], {so} offen offset:{(u%2)*2048+rh*256}{LDF}", ('A', u))
        else:
            q = uu % 4
            pipe.vmem(f"buffer_load_dwordx4 {dst}, v{vA16}, s[{SA}:{SA+3}], s{sA0+q//2} offen offset:{(q%2)*2048+rh*256}{LDF}", ('A', u))
    def h_dma(stage, soff):
        pipe.vmem(f"buffer_load_dwordx4 v{vHoff}, s[{SH}:{SH+3}], {soff} offen{LDF} lds", ('D', stage))
    def b_read(u, cb, e):
        st = (u // 2) % 2; ub = u % 2
        off = st * STG + (4 * ub + e) * 3072 + (cb // 4) * 1024
        pipe.lds(f"ds_read_b64_tr_b16 v[{BS+4*cb+2*e}:{BS+4*cb+2*e+1}], v{vRd[cb%4]} offset:{off}", ('B', u, cb))
    def h_read(u, part):
        st = (u // 2) % 2; ub = u % 2
        if part < 2:
            for e in range(2):
                pipe.lds(f"ds_read_b64_tr_b16 v[{HB+4*part+2*e}:{HB+4*part+2*e+1}], v{vRdH} offset:{st*STG + (4*ub+e)*3072 + (1+part)*1024}", ('H', u))
        else:
            h = HF + 4 * (u % 2)
            pipe.lds(f"ds_read_b128 v[{h}:{h+3}], v{vRdA} offset:{st*STG + 24576 + 2*ub*1024}", ('H', u))
    def m_halo(u, part):
        h = f"v[{HF+4*(u%2)}:{HF+4*(u%2)+3}]"; w = f"v[{HB+4*part}:{HB+4*part+3}]"; acc = f"v[{HACC+4*part}:{HACC+4*part+3}]"
        return f"v_mfma_f32_16x16x32_bf16 {acc}, {w}, {h}, {acc}" if part == 0 else f"v_mfma_f32_16x16x32_bf16 {acc}, {h}, {w}, {acc}"
    pipe.it = -1
    E(f"s_movk_i32 s{sCnt}, 4096")
    E(f"v_lshrrev_b32 v{t3}, 2, v{vI}")
    E(f"v_lshl_add_u32 v{t3}, v{vG2}, 2, v{t3}")
    E(f"v_lshlrev_b32 v{t3}, 7, v{t3}")
    E(f"v_and_b32 v{t2}, 3, v{vI}")
    E(f"v_lshl_add_u32 v{t3}, v{t2}, 3, v{t3}")
    E(f"v_mul_u32_u24 v{t2}, 6144, v{vH}")
    E(f"v_add_u32 v{t3}, v{t3}, v{t2}")
    E(f"v_lshrrev_b32 v{t2}, 3, v{vI}")
    E(f"v_lshl_add_u32 v{t2}, v{t2}, 1, v{vG2}")
    for c4 in range(4):
        E(f"v_xor_b32 v{vT+4}, {c4}, v{t2}")
        E(f"v_lshl_add_u32 v{vRb[c4]}, v{vT+4}, 5, v{t3}")
        E(f"v_mov_b32 v{vRd[c4]}, v{vRb[c4]}")
    if A:
        E(f"v_xor_b32 v{vT+4}, v{vW}, v{t2}")
        E(f"v_lshl_add_u32 v{vRbH}, v{vT+4}, 5, v{t3}")
        E(f"v_mov_b32 v{vRdH}, v{vRbH}")
        E(f"v_cmp_eq_u32 vcc, 1, v{vG2}")
        E(f"v_mov_b32 v{vHoff}, 0x7ffffff0")
        E(f"v_cndmask_b32 v{vHoff}, v{vHoff}, v{vAoff}, vcc")
        E(f"v_add_u32 v{vRbA}, 256, v{vA16}")
        E(f"v_mov_b32 v{vRdA}, v{vRbA}")
    for i in range(96 + (8 if A else 0)): E(f"v_mov_b32 v{ACC+i}, 0")
    if A:
        for i in range(16): E(f"v_mov_b32 v{HB+i}, 0")
    cpoll(E, name, [sR, 44] if A else [sR], 16, SWS, 47)
    if A:
        E(f"s_lshl_b32 s{sH0}, s{sW}, 10")
        E(f"s_add_u32 s45, s{sH0}, 24576")
        E("s_mov_b32 m0, s45")
        h_dma(0, f"s{sH0}")
    def pro_h(st):
        if A:
            E(f"s_add_u32 m0, s45, {st*STG}")
            E(f"s_add_u32 s{sH0}, s{sH0}, 4096")
            h_dma(st, f"s{sH0}")
    pro_h(1)
    for u in range(D):
        if u == 2: pro_h(2)
        for rh in range(2): a_load(u, rh)
    if A: E(f"s_add_u32 s{sH0}, s{sH0}, 4096")
    E(f"s_mov_b32 s{sA0}, {D*2048}")
    E(f"s_mov_b32 s{sA0+1}, {D*2048+4096}")
    E(f"s_mov_b32 s{sPair}, 0")
    E(f"s_mov_b32 s{sCnt}, 8")
    if A: pipe.wait(vm=[('D', 0)])
    E("s_barrier")
    stamp(E, 1)
    for cb in range(11):
        for e in range(2): b_read(0, cb, e)
    for u in range(32):
        pipe.it = u // 4
        stage, ub, q = u // 2, u % 2, u % 4
        for cb in range(12):
            for rh in range(2):
                if cb == 0 and rh == 0:
                    pipe.wait(vm=[('A', u)], lg=[('B', u, 0), ('B', u, 1)] + ([('H', u - 1)] if A else []))
                    if A:
                        E(m_halo(u - 1, 0)); E(m_halo(u - 1, 1))
                elif rh == 0 and cb % 2 == 0:
                    pipe.wait(lg=[('B', u, cb), ('B', u, cb + 1)])
                bb = f"v[{BS+4*cb}:{BS+4*cb+3}]"
                aa = f"a[{8*(u%4)+4*rh}:{8*(u%4)+4*rh+3}]"
                acc = f"v[{ACC+8*cb+4*rh}:{ACC+8*cb+4*rh+3}]"
                if cb >= 8: E(f"v_mfma_f32_16x16x32_bf16 {acc}, {aa}, {bb}, {acc}")
                else:       E(f"v_mfma_f32_16x16x32_bf16 {acc}, {bb}, {aa}, {acc}")
                if cb == 0:
                    b_read(u, 11, rh)
                    if rh == 1 and ub == 1:
                        if A: pipe.wait(vm=[('D', stage + 1)])
                        E("s_barrier")
                        if q == 3:
                            E(f"s_xor_b32 s{sPair}, s{sPair}, {PAIR}")
                            for c4 in range(4): E(f"v_add_u32 v{vRd[c4]}, s{sPair}, v{vRb[c4]}")
                        if A:
                            E(f"s_xor_b32 s{sM}, s{sPair}, {PAIR}")
                            if q == 1: E(f"s_add_u32 s{sM}, s{sM}, {STG}")
                            E(f"s_cmp_le_u32 s{sCnt}, {1 if q == 1 else 2}")
                            E(f"s_cselect_b32 s{sM}, {DROP}, s{sM}")
                            E(f"s_add_u32 m0, s{sM}, s45")
                            h_dma(stage + 3, f"s{sH0}")
                            E(f"s_add_u32 s{sH0}, s{sH0}, 4096")
                else:
                    b_read(u + 1, cb - 1, rh)
                if A and rh == 1 and cb in (2, 4, 6): h_read(u, cb // 2 - 1)
                ac = int(os.environ.get("ACB", "1"))
                if rh == 0 and cb in (ac, ac + 2): a_load(u + D, (cb - ac) // 2)
        if A and q == 3:
            E(f"v_add_u32 v{vRdH}, s{sPair}, v{vRbH}")
            E(f"v_add_u32 v{vRdA}, s{sPair}, v{vRbA}")
        if q == 3:
            for sx in (sA0, sA0 + 1): E(f"s_add_u32 s{sx}, s{sx}, 8192")
            E(f"s_sub_u32 s{sCnt}, s{sCnt}, 1")
            E(f"s_cmp_lg_u32 s{sCnt}, 0")
    pipe.fold(p, 8, f"{name}_loop", f"s_cbranch_scc1 {name}_loop")
    p("s_waitcnt lgkmcnt(0)")
    if A:
        p(m_halo(31, 0)); p(m_halo(31, 1))
        p(f"s_cmp_eq_u32 s{sPH}, s{sLAST}")
        p(f"s_cselect_b32 s{sPRE}, 0, 112")
    stamp(p, 2)
    CSV = BS
    MR = BS + 32
    CL = TMP
    vM = [vT, vT + 2]; vS = [vT + 4, vT + 6]; vQ = [vT + 8, vT + 10]
    vGa, vIa = vRd[0], vRd[1]
    p(f"v_lshrrev_b32 v{vGa}, 4, v{vL}")
    p(f"v_lshlrev_b32 v{vGa}, 4, v{vGa}")
    p(f"v_add_u32 v{vGa}, {MISC}, v{vGa}")
    p(f"v_lshlrev_b32 v{vIa}, 2, v{vI}")
    p(f"v_add_u32 v{vIa}, {MISC}, v{vIa}")
    p(f"v_lshl_add_u32 v{vRd[2]}, v{vW}, 7, v{vIa}")
    p(f"v_lshl_add_u32 v{vRd[3]}, v{vW}, 7, v{vGa}")
    for rh in range(2):
        p(f"ds_read_b32 v{vM[rh]}, v{vRd[2]} offset:{MEAN_O+64*rh}")
        p(f"ds_read_b32 v{vS[rh]}, v{vRd[2]} offset:{RSTD_O+64*rh}")
    order = [4, 5, 6, 7, 0, 1, 2, 3] if A else list(range(8))
    for cb in order: p(f"ds_read_b128 v[{CSV+4*cb}:{CSV+4*cb+3}], v{vGa} offset:{64*cb}")
    p("s_waitcnt lgkmcnt(8)")
    for rh in range(2):
        p(f"ds_read_b128 v[{MR+4*rh}:{MR+4*rh+3}], v{vRd[3]} offset:{MEAN_O+64*rh}")
        p(f"ds_read_b128 v[{MR+8+4*rh}:{MR+8+4*rh+3}], v{vRd[3]} offset:{RSTD_O+64*rh}")
        p(f"v_mul_f32 v{vQ[rh]}, {f32bits(QSCALE):#x}, v{vS[rh]}")
    def AC(cb, rh): return ACC + 8 * cb + 4 * rh
    def ln_sw(acc, cs, mean, rs):
        for r in (0, 2):
            p(f"v_pk_fma_f32 v[{acc+r}:{acc+r+1}], v[{mean}:{mean+1}], v[{cs+r}:{cs+r+1}], v[{acc+r}:{acc+r+1}] op_sel_hi:[0,1,1] neg_lo:[1,0,0] neg_hi:[1,0,0]")
        for r in (0, 2):
            p(f"v_pk_mul_f32 v[{acc+r}:{acc+r+1}], v[{rs}:{rs+1}], v[{acc+r}:{acc+r+1}] op_sel_hi:[0,1]")
    def ln_nm(acc, cl, mr, sr):
        for r in (0, 2):
            p(f"v_pk_fma_f32 v[{acc+r}:{acc+r+1}], v[{mr+r}:{mr+r+1}], v[{cl}:{cl+1}], v[{acc+r}:{acc+r+1}] op_sel_hi:[1,0,1] neg_lo:[1,0,0] neg_hi:[1,0,0]")
        for r in (0, 2):
            p(f"v_pk_mul_f32 v[{acc+r}:{acc+r+1}], v[{sr+r}:{sr+r+1}], v[{acc+r}:{acc+r+1}]")
    def pack2(dst, acc):
        p(f"v_cvt_pk_bf16_f32 v{dst}, v{acc}, v{acc+1}")
        p(f"v_cvt_pk_bf16_f32 v{dst+1}, v{acc+2}, v{acc+3}")
    def QK(seg, c, rh): return AC(seg * 4 + 2 * c, rh)
    def do_qk(seg, c):
        for rh in range(2):
            for nb in range(2):
                cb = seg * 4 + 2 * c + nb
                ln_sw(AC(cb, rh), CSV + 4 * cb, vM[rh], (vQ if seg == 0 else vS)[rh])
        for rh in range(2):
            d = QK(seg, c, rh)
            pack2(d, AC(seg * 4 + 2 * c, rh))
            pack2(d + 2, AC(seg * 4 + 2 * c + 1, rh))
    if not A:
        p(f"s_lshl_b32 s3, s{sCT}, 18")
        p(f"s_lshl_b32 s22, s{sR}, 11")
        p("s_add_u32 s3, s3, s22")
        p(f"s_lshr_b32 s22, s{sLAY}, 1")
        p(f"s_mul_i32 s22, s22, {12*MB}")
        p("s_add_u32 s3, s3, s22")
        for c4 in range(4): p(f"ds_read_b32 v{CL+2*c4}, v{vIa} offset:{512+64*c4}")
        n = 0
        for seg in range(2):
            for c in range(2):
                p(f"s_waitcnt lgkmcnt({min(15, 14 - 2*n)})"); n += 1
                do_qk(seg, c)
                p(f"s_add_u32 s22, s3, {(QF, KF)[seg] + c*131072}")
                for rh in range(2):
                    d = QK(seg, c, rh)
                    p(f"buffer_store_dwordx4 v[{d}:{d+3}], v{vA16}, s[{SWS}:{SWS+3}], s22 offen offset:{256*rh}{STFLAG}")
        p(f"v_lshl_add_u32 v{vRb[0]}, v{vH}, 4, v{vI}")
        p(f"v_lshl_add_u32 v{vRb[0]}, v{vG2}, 5, v{vRb[0]}")
        p(f"v_lshlrev_b32 v{vRb[0]}, 4, v{vRb[0]}")
        p("s_waitcnt lgkmcnt(0)")
        for c in range(2):
            for rh in range(2):
                for nb in range(2):
                    ln_nm(AC(8 + 2 * c + nb, rh), CL + 2 * (2 * c + nb), MR + 4 * rh, MR + 8 + 4 * rh)
            p(f"s_add_u32 s22, s3, {VF + c*131072}")
            for rh in range(2):
                d = AC(8 + 2 * c, rh)
                pack2(d, d); pack2(d + 2, AC(8 + 2 * c + 1, rh))
                p(f"v_permlane32_swap_b32 v{d}, v{d+2}")
                p(f"v_permlane32_swap_b32 v{d+1}, v{d+3}")
                p(f"buffer_store_dwordx4 v[{d}:{d+3}], v{vRb[0]}, s[{SWS}:{SWS+3}], s22 offen offset:{1024*rh}{STFLAG}")
    else:
        HP = TMP + 8
        for c4 in range(4): p(f"ds_read_b32 v{CL+2*c4}, v{vIa} offset:{512+64*c4}")
        vX = vRb[0]
        p(f"v_lshl_add_u32 v{vX}, v{vW}, 12, v{vAoff}")
        p(f"v_add_u32 v{vX}, {XCH}, v{vX}")
        p("s_waitcnt lgkmcnt(14)")
        do_qk(1, 0)
        p(f"ds_write_b128 v{vX}, v[{QK(1,0,1)}:{QK(1,0,1)+3}] offset:4096")
        p("s_waitcnt lgkmcnt(13)")
        do_qk(1, 1)
        p(f"ds_write_b128 v{vX}, v[{QK(1,1,1)}:{QK(1,1,1)+3}] offset:5120")
        p(f"v_lshl_add_u32 v{vRb[1]}, v{vW}, 6, v{vGa}")
        p(f"v_lshl_add_u32 v{vRb[2]}, v{vW}, 6, v{vIa}")
        p(f"ds_read_b128 v[{HP}:{HP+3}], v{vRb[1]} offset:256")
        p(f"ds_read_b128 v[{HP+4}:{HP+7}], v{vGa} offset:{MEAN_O+512+64}")
        p(f"ds_read_b128 v[{HP+8}:{HP+11}], v{vGa} offset:{RSTD_O+512+64}")
        p(f"ds_read_b32 v{HP+12}, v{vIa} offset:{MEAN_O+512+64}")
        p(f"ds_read_b32 v{HP+14}, v{vIa} offset:{RSTD_O+512+64}")
        p(f"ds_read_b32 v{HB}, v{vRb[2]} offset:512")
        p("s_waitcnt lgkmcnt(8)")
        def VP(c, nb): return ACC + 8 * (8 + 2 * c + nb)
        for c in range(2):
            for nb in range(2):
                b0 = VP(c, nb)
                for rh in range(2): ln_nm(b0 + 4 * rh, CL + 2 * (2 * c + nb), MR + 4 * rh, MR + 8 + 4 * rh)
                p(f"v_cvt_pk_bf16_f32 v{b0+2}, v{b0+2}, v{b0+3}")
                p(f"v_cvt_pk_bf16_f32 v{b0+3}, v{b0}, v{b0+1}")
                p(f"v_swap_b32 v{b0+2}, v{b0+3}")
                pack2(b0 + 4, b0 + 4)
                p(f"ds_write_b64 v{vX}, v[{b0+4}:{b0+5}] offset:{4096+2048+1024*c+8*nb}")
        p("s_waitcnt lgkmcnt(4)")
        ln_sw(HACC, HP, HP + 12, HP + 14)
        ln_nm(HACC + 4, HB, HP + 4, HP + 8)
        pack2(HACC, HACC); pack2(HACC + 2, HACC + 4)
        p(f"s_lshr_b32 s3, s{sW}, 1")
        p("s_lshl_b32 s3, s3, 10")
        p(f"s_and_b32 s22, s{sW}, 1")
        p("s_lshl_b32 s22, s22, 3")
        p("s_add_u32 s3, s3, s22")
        p(f"s_add_u32 s3, s3, {XCH}")
        p(f"v_add_u32 v{vRb[1]}, s3, v{vAoff}")
        p(f"ds_write_b64 v{vRb[1]}, v[{HACC}:{HACC+1}]")
        p(f"ds_write_b64 v{vRb[1]}, v[{HACC+2}:{HACC+3}] offset:2048")
        do_qk(0, 0); do_qk(0, 1)
        MO, MP = TMP + 16, TMP + 20
        p(f"v_lshrrev_b32 v{vRb[2]}, 4, v{vL}")
        p(f"v_lshlrev_b32 v{vRb[2]}, 2, v{vRb[2]}")
        p(f"v_sub_u32 v{vRb[2]}, v{vI}, v{vRb[2]}")
        p(f"v_mov_b32 v{vRb[3]}, {f32bits(-1e30):#x}")
        for n in range(8):
            add = -(n % 4) + (16 if n >= 4 else 0)
            p(f"v_add_u32 v{vRd[2]}, {add & 0xffffffff:#x}, v{vRb[2]}")
            p(f"v_and_b32 v{vRd[2]}, 0xfffffff1, v{vRd[2]}")
            p(f"v_cmp_eq_u32 vcc, 0, v{vRd[2]}")
            p(f"v_cndmask_b32 v{MO+n}, v{vRb[3]}, 0, vcc")
        def SS(c, rh): return BS + 8 * (2 * c + rh)
        KP = [BS + 32, BS + 36]
        for c in range(2):
            for rh in range(2):
                p(f"v_mfma_f32_16x16x32_bf16 v[{SS(c,rh)+4}:{SS(c,rh)+7}], v[{QK(1,c,rh)}:{QK(1,c,rh)+3}], v[{QK(0,c,rh)}:{QK(0,c,rh)+3}], v[{MO}:{MO+3}]")
            p(f"v_mfma_f32_16x16x32_bf16 v[{SS(c,1)}:{SS(c,1)+3}], v[{QK(1,c,0)}:{QK(1,c,0)+3}], v[{QK(0,c,1)}:{QK(0,c,1)+3}], v[{MP}:{MP+3}]")
        p("s_waitcnt lgkmcnt(0)")
        p("s_barrier")
        for c in range(2): p(f"ds_read_b128 v[{KP[c]}:{KP[c]+3}], v{vX} offset:{1024*c}")
        for c in range(2):
            for nb in range(2): p(f"ds_read_b64 v[{VP(c,nb)}:{VP(c,nb)+1}], v{vX} offset:{2048+1024*c+8*nb}")
        p(f"s_cmp_lg_u32 s{sR}, 0")
        p(f"s_cbranch_scc1 {name}_hasprev")
        for r in range(4): p(f"v_mov_b32 v{MP+r}, {f32bits(-1e30):#x}")
        p.label(f"{name}_hasprev")
        p(f"s_lshl_b32 s3, s{sR}, 16")
        p(f"s_lshl_b32 s22, s{sCT}, 12")
        p("s_add_u32 s3, s3, s22")
        p("s_add_u32 s3, s3, s20")
        p(f"s_add_u32 s3, s3, {OF}")
        p("s_waitcnt lgkmcnt(4)")
        for c in range(2):
            p(f"v_mfma_f32_16x16x32_bf16 v[{SS(c,0)}:{SS(c,0)+3}], v[{KP[c]}:{KP[c]+3}], v[{QK(0,c,0)}:{QK(0,c,0)+3}], v[{MP}:{MP+3}]")
        combos = [(0, 1), (1, 1), (0, 0), (1, 0)]
        MX = {cmb: vT + 2 * n for n, cmb in enumerate(combos)}
        LS = {cmb: TMP + 2 * n for n, cmb in enumerate(combos)}
        def allred(regs, op):
            for sw in ("v_permlane32_swap_b32", "v_permlane16_swap_b32"):
                for m in regs: p(f"v_mov_b32 v{m+1}, v{m}")
                for m in regs: p(f"{sw} v{m}, v{m+1}")
                for m in regs: p(f"{op} v{m}, v{m}, v{m+1}")
        for cmb in combos:
            e = SS(*cmb); m = MX[cmb]
            p(f"v_max3_f32 v{m}, v{e}, v{e+1}, v{e+2}")
            p(f"v_max3_f32 v{m}, v{m}, v{e+3}, v{e+4}")
            p(f"v_max3_f32 v{m}, v{m}, v{e+5}, v{e+6}")
            p(f"v_max_f32 v{m}, v{m}, v{e+7}")
        allred([MX[c] for c in combos], "v_max_f32")
        p("s_waitcnt lgkmcnt(0)")
        def OO(c, rh): return ACC + 8 * (1 + 2 * (2 * c + rh))
        PPk = {cmb: BS + 32 + 4 * n for n, cmb in enumerate(combos)}
        for cmb in combos:
            c, rh = cmb
            e = SS(*cmb); m = MX[cmb]; l = LS[cmb]; pk = PPk[cmb]
            for r in range(0, 8, 2):
                p(f"v_pk_add_f32 v[{e+r}:{e+r+1}], v[{e+r}:{e+r+1}], v[{m}:{m+1}] op_sel_hi:[1,0] neg_lo:[0,1] neg_hi:[0,1]")
            for r in range(8): p(f"v_exp_f32 v{e+r}, v{e+r}")
            for r in range(4): p(f"v_cvt_pk_bf16_f32 v{pk+r}, v{e+2*r}, v{e+2*r+1}")
            for nb in range(2):
                v = VP(c, nb) + 2 * rh
                p(f"v_mfma_f32_16x16x32_bf16 v[{OO(c,rh)+4*nb}:{OO(c,rh)+4*nb+3}], v[{v}:{v+3}], v[{pk}:{pk+3}], 0")
            p(f"v_pk_add_f32 v[{l}:{l+1}], v[{e}:{e+1}], v[{e+2}:{e+3}]")
            p(f"v_pk_add_f32 v[{l}:{l+1}], v[{l}:{l+1}], v[{e+4}:{e+5}]")
            p(f"v_pk_add_f32 v[{l}:{l+1}], v[{l}:{l+1}], v[{e+6}:{e+7}]")
            p(f"v_add_f32 v{l}, v{l}, v{l+1}")
        allred([LS[c] for c in combos], "v_add_f32")
        for cmb in combos: p(f"v_rcp_f32 v{LS[cmb]}, v{LS[cmb]}")
        for cmb in combos:
            c, rh = cmb
            o = OO(c, rh); l = LS[cmb]
            for r in range(0, 8, 2):
                p(f"v_pk_mul_f32 v[{o+r}:{o+r+1}], v[{l}:{l+1}], v[{o+r}:{o+r+1}] op_sel_hi:[0,1]")
            pack2(o, o); pack2(o + 2, o + 4)
            p(f"v_permlane32_swap_b32 v{o}, v{o+2}")
            p(f"v_permlane32_swap_b32 v{o+1}, v{o+3}")
            p(f"buffer_store_dwordx4 v[{o}:{o+3}], v{vA16}, s[{SWS}:{SWS+3}], s3 offen offset:{c*2048+rh*256}{STX}")
    stamp_out(p, 4, 0 if A else 1, SWS, vT, sW)
    if A: cpublish(p, sR, SWS, 47)
    else:
        p(f"s_lshl_b32 s3, s{sCT}, 3")
        p(f"s_lshr_b32 s22, s{sR}, 3")
        p("s_add_u32 s22, s22, s3")
        cpublish(p, 22, SWS, 47)
    p.label(f"{name}_loader")
    p(f"v_lshrrev_b32 v{t0}, 3, v{vL}")
    p(f"v_mul_u32_u24 v{t1}, 6144, v{t0}")
    p(f"v_and_b32 v{t2}, 2, v{t0}")
    p(f"v_lshrrev_b32 v{t3}, 2, v{t0}")
    p(f"v_or_b32 v{t2}, v{t2}, v{t3}")
    p(f"v_bfe_u32 v{t3}, v{vL}, 1, 2")
    p(f"v_xor_b32 v{t2}, v{t2}, v{t3}")
    p(f"v_lshl_add_u32 v{t1}, v{t2}, 5, v{t1}")
    p(f"v_and_b32 v{t2}, 1, v{vL}")
    p(f"v_lshl_add_u32 v{t1}, v{t2}, 4, v{t1}")
    p(f"s_sub_u32 s3, s{sW}, 5")
    p(f"s_lshl_b32 s{sWb}, s3, 10")
    p("s_lshl_b32 s3, s3, 11")
    p(f"s_lshl_b32 s22, s{sCT}, 7")
    p("s_add_u32 s3, s3, s22")
    p(f"v_add_u32 v{vDma}, s3, v{t1}")
    p(f"s_mov_b32 s{sWr}, 0")
    PACE = int(os.environ.get("PACE", "0"))
    def w_stage(slot, pace=0):
        for rg in range(8):
            p(f"s_add_u32 m0, s{sWb}, {slot*STG + rg*3072}")
            p(f"buffer_load_dwordx4 v{vDma}, s[{SWq}:{SWq+3}], s{sWr} offen lds")
            p(f"s_add_u32 s{sWr}, s{sWr}, 49152")
            if pace: p(f"s_waitcnt vmcnt({pace})")
    for st in range(3): w_stage(st)
    p("s_waitcnt vmcnt(16)")
    p("s_barrier")
    p(f"s_mov_b32 s{sCnt}, 3")
    p.label(f"{name}_lloop")
    for j in range(4):
        p("s_waitcnt vmcnt(8)")
        p("s_barrier")
        w_stage((j + 3) % 4, PACE)
    p(f"s_sub_u32 s{sCnt}, s{sCnt}, 1")
    p(f"s_cmp_lg_u32 s{sCnt}, 0")
    p(f"s_cbranch_scc1 {name}_lloop")
    p("s_waitcnt vmcnt(8)")
    p("s_barrier")
    w_stage(3)
    p.label(f"{name}_tail")
    if A:
        p(f"s_load_dwordx2 s[4:5], s[0:1], {KA_WO_A}")
        wo_lane(p, 11, vL, vT, 47)
        for j in range(1, 4): p(f"v_add_u32 v{11+j}, {j*(16384-1024)}, v11")
        p(f"s_and_b32 s{sWb}, s{sW}, 3")
        p("s_waitcnt lgkmcnt(0)")
        srd(p, SA, 4, 5, 2 * MB)
        p(f"s_cmp_eq_u32 s{sPH}, s{sLAST}")
        p(f"s_cselect_b32 s{sPRE}, 0, 112")
        p(f"s_cselect_b32 s{sWr}, 8, 0")
        for n, end in enumerate((1, 3, 5, 7)):
            if n == 0: p("s_waitcnt vmcnt(8)")
            if n == 1: p("s_waitcnt vmcnt(4)")
            p("s_barrier")
            wo_load_stages(p, f"{name}_ld{n}", 11, SA, sWb, sWr, end, 47)
        p("s_waitcnt vmcnt(0)")
    else:
        p("s_waitcnt vmcnt(8)")
        p("s_barrier")
        p("s_waitcnt vmcnt(0)")
        p("s_barrier")
        p("s_barrier")
    idle_barriers(p, 0)
    p.label(f"{name}_helper")
    hstart = len(p.insts)
    p("s_barrier")
    NTL = 5 if A else 4
    SB = 32
    CB = SB + 80
    p(f"s_lshl_b32 s23, s{sRT}, 14")
    p("s_add_u32 s23, s23, s21")
    for tl in range(NTL):
        if tl == 4:
            p("s_lshl_b32 s23, s44, 12")
            p("s_add_u32 s23, s23, s21")
        for i in range(4):
            p(f"buffer_load_dwordx4 v[{SB+16*tl+4*i}:{SB+16*tl+4*i+3}], v{vAoff}, s[{SWS}:{SWS+3}], s23 offen offset:{1024*i}{LDF}")
        if tl < 3: p("s_add_u32 s23, s23, 4096")
        if tl in (1, 3): p("s_barrier")
    csbase = CS + (0 if A else 4 * 49152)
    p(f"v_lshrrev_b32 v{vT}, 4, v{vL}")
    p(f"v_min_u32 v{vT}, 2, v{vT}")
    p(f"v_lshlrev_b32 v{vT}, 7, v{vT}")
    p(f"v_add_u32 v{vT}, v{vT}, v{vI}")
    p(f"s_lshr_b32 s22, s{sCT}, 1")
    p("s_lshl_b32 s22, s22, 4")
    p(f"v_add_u32 v{vT}, s22, v{vT}")
    p(f"v_lshlrev_b32 v{vT}, 6, v{vT}")
    p(f"v_mov_b32 v{vT+1}, {(768 if A else 384) * 64}")
    p(f"v_cmp_lt_u32 vcc, 47, v{vL}")
    p(f"v_cndmask_b32 v{vT}, v{vT}, v{vT+1}, vcc")
    poll(p, name + "_h2", vT, vT + 1, SWS, 47, base=FLC + (0 if A else 384 * 64))
    p(f"s_lshl_b32 s22, s{sCT}, 10")
    for sg in range(3):
        for i in range(4):
            p(f"s_add_u32 s23, s22, {csbase + i*49152 + sg*16384}")
            p(f"buffer_load_dwordx4 v[{CB+16*sg+4*i}:{CB+16*sg+4*i+3}], v{vAoff}, s[{SWS}:{SWS+3}], s23 offen{LDF}")
        if sg == 0: p("s_barrier")
    p("s_barrier")
    p(f"v_and_b32 v{vT+4}, 31, v{vL}")
    p(f"v_lshlrev_b32 v{vT+4}, 2, v{vT+4}")
    p(f"v_add_u32 v{vT+4}, {MISC}, v{vT+4}")
    for tl in range(NTL):
        base = SB + 16 * tl
        s0, s1 = vT, vT + 1
        p(f"v_pk_add_f32 v[{s0}:{s1}], v[{base}:{base+1}], v[{base+2}:{base+3}]")
        for i in range(2, 8):
            p(f"v_pk_add_f32 v[{s0}:{s1}], v[{s0}:{s1}], v[{base+2*i}:{base+2*i+1}]")
        p(f"v_mov_b32 v{vT+2}, v{s0}")
        p(f"v_mov_b32 v{vT+3}, v{s1}")
        p(f"v_permlane32_swap_b32 v{s0}, v{vT+2}")
        p(f"v_permlane32_swap_b32 v{s1}, v{vT+3}")
        p(f"v_pk_add_f32 v[{s0}:{s1}], v[{s0}:{s1}], v[{vT+2}:{vT+3}]")
        p(f"v_mul_f32 v{base}, {f32bits(1/1024):#x}, v{s0}")
        p(f"v_mul_f32 v{s1}, {f32bits(1/1024):#x}, v{s1}")
        p(f"v_fma_f32 v{s1}, -v{base}, v{base}, v{s1}")
        p(f"v_max_f32 v{s1}, 0, v{s1}")
        p(f"v_add_f32 v{s1}, {f32bits(1e-5):#x}, v{s1}")
        p(f"v_rsq_f32 v{base+1}, v{s1}")
        p(f"ds_write_b32 v{vT+4}, v{base} offset:{MEAN_O + 128*tl}")
        p(f"ds_write_b32 v{vT+4}, v{base+1} offset:{RSTD_O + 128*tl}")
        if tl in (1, 3) and tl < NTL - 1: p("s_barrier")
    p("s_barrier")
    p(f"v_lshlrev_b32 v{vT+4}, 2, v{vL}")
    p(f"v_add_u32 v{vT+4}, {MISC}, v{vT+4}")
    for sg in range(3):
        b = CB + 16 * sg
        p(f"s_waitcnt vmcnt({(2-sg)*4})")
        for i in range(1, 8):
            p(f"v_pk_add_f32 v[{b}:{b+1}], v[{b}:{b+1}], v[{b+2*i}:{b+2*i+1}]")
        p(f"v_add_f32 v{b}, v{b}, v{b+1}")
        p(f"ds_write_b32 v{vT+4}, v{b} offset:{256*sg}")
    p("s_waitcnt lgkmcnt(0)")
    hb = sum(1 for i in p.insts[hstart:] if i.op == 's_barrier')
    for i in range(14 - hb): p("s_barrier")
    p(f"s_branch {name}_tail")
    return p, (NVG, 32)

WO_LDS = 131072
WO_TOUCH = os.environ.get("WO_TOUCH", "0") == "1"
WO_PF0 = int(os.environ.get("WO_PF0", "2"))
WO_PFD = int(os.environ.get("WO_PFD", "1"))

def gen_wo(final):
    p = Prog()
    name = "woF" if final else "wo"
    p(".p2align 6")
    p.label(f"{name}_body")
    p(f"s_lshl_b32 s20, s{sLAY}, 22")
    p(f"s_add_u32 s21, s20, {4*MB}")
    p(f"s_lshl_b32 s22, s{sLAY}, 18")
    p(f"s_add_u32 s22, s22, {ST[1]}")
    p(f"s_bitcmp1_b32 s{sLAY}, 0")
    p(f"s_cselect_b32 s23, {KA_WO_B}, {KA_WO_A}")
    stamp(p, 0)
    p("s_load_dwordx2 s[4:5], s[0:1], s23")
    p(f"s_load_dwordx2 s[6:7], s[0:1], {KA_WS}")
    if final: p(f"s_load_dwordx2 s[44:45], s[0:1], {KA_OUT}")
    vL, vW, vH, vI = 1, 2, 3, 4
    vAoff = 5
    vDma = 6
    vRdE, vRdO = 12, 13
    vT = 16
    ACC = 32
    BS = 64
    XO = 96
    AR = 112
    sW, sRT, sCT, sR = 8, 9, 10, 11
    SA, SWo, SWS = 12, 24, 28
    sA = [32, 33, 34, 35]; sW0, sM, sCnt, sWb, sWr = 36, 39, 40, 41, 47
    p(f"v_and_b32 v{vL}, 63, v0")
    p(f"v_lshrrev_b32 v{vW}, 6, v0")
    p(f"v_lshlrev_b32 v{vAoff}, 4, v{vL}")
    p(f"v_readfirstlane_b32 s{sW}, v{vW}")
    if ROWMAP:
        p("s_and_b32 s3, s2, 7")
        p("s_lshl_b32 s3, s3, 1")
        p("s_bfe_u32 s11, s2, 0x10003")
        p(f"s_add_u32 s{sRT}, s3, s11")
        p(f"s_lshr_b32 s{sCT}, s2, 4")
    else:
        p("s_and_b32 s3, s2, 3")
        p("s_lshl_b32 s3, s3, 2")
        p("s_bfe_u32 s11, s2, 0x20003")
        p(f"s_add_u32 s{sRT}, s3, s11")
        p("s_bfe_u32 s3, s2, 0x10002")
        p("s_lshl_b32 s3, s3, 3")
        p("s_lshr_b32 s11, s2, 5")
        p(f"s_add_u32 s{sCT}, s3, s11")
    t0, t1, t2, t3 = vT, vT + 1, vT + 2, vT + 3
    p(f"v_lshrrev_b32 v{t0}, 3, v{vL}")
    p(f"v_lshlrev_b32 v{t1}, 11, v{t0}")
    p(f"v_lshrrev_b32 v{t2}, 2, v{vL}")
    p(f"v_lshrrev_b32 v{t3}, 4, v{vL}")
    p(f"v_xor_b32 v{t2}, v{t2}, v{t3}")
    p(f"v_and_b32 v{t2}, 1, v{t2}")
    p(f"v_lshl_add_u32 v{t1}, v{t2}, 6, v{t1}")
    p(f"v_and_b32 v{t2}, 3, v{vL}")
    p(f"v_lshl_add_u32 v{t1}, v{t2}, 4, v{t1}")
    p(f"s_lshl_b32 s3, s{sCT}, 7")
    p(f"v_add_u32 v{vDma}, s3, v{t1}")
    for j in range(1, 4):
        p(f"v_add_u32 v{vDma+j}, {j*(16384-1024)}, v{vDma}")
    p(f"s_and_b32 s3, s{sW}, 3")
    p(f"s_lshl_b32 s{sWb}, s3, 12")
    p(f"s_lshl_b32 s{sWr}, s3, 16")
    p(f"s_lshl_b32 s3, s{sRT}, 2")
    p(f"s_add_u32 s{sR}, s3, s{sW}")
    p(f"s_lshl_b32 s42, s{sR}, 16")
    p(f"s_add_u32 s43, s42, {OF}")
    p("s_add_u32 s43, s43, s20")
    p("s_waitcnt lgkmcnt(0)")
    srd(p, SWo, 4, 5, 2 * MB)
    p(f"s_cmp_gt_u32 s{sW}, 3")
    p(f"s_cbranch_scc1 {name}_idle")
    srd_off(p, SA, 6, 7, "s43", 65536)
    srd(p, SWS, 6, 7, WSR)
    D = 15; BD = 3
    pipe = Pipe()
    E = pipe.emit
    def a_load(k):
        kk = k - D
        if kk < 0:
            if k % 4 == 0: E(f"s_mov_b32 s{sCnt}, {(k//4)*4096}")
            pipe.vmem(f"buffer_load_dwordx4 v[{AR+4*(k%16)}:{AR+4*(k%16)+3}], v{vAoff}, s[{SA}:{SA+3}], s{sCnt} offen offset:{(k%4)*1024}{LDF}", ('A', k))
        else:
            q = kk % 16
            pipe.vmem(f"buffer_load_dwordx4 v[{AR+4*(k%16)}:{AR+4*(k%16)+3}], v{vAoff}, s[{SA}:{SA+3}], s{sA[q//4]} offen offset:{(q%4)*1024}{LDF}", ('A', k))
    def dma(stage, j, soff):
        pass
    vRb = [10, 11]
    vRs = [[12, 13], [14, 15]]
    sSl = 52
    def b_read(k, t, kbase):
        kk = k % 8
        dst = BS + (k % 4) * 8 + t * 4
        base = vRs[(k // 8) % 2][t]
        for e in range(2):
            off = (kk * 16 + e * 8) * 128 + t * 64
            pipe.lds(f"ds_read_b64_tr_b16 v[{dst+2*e}:{dst+2*e+1}], v{base} offset:{off}", ('B', k, t))
    pipe.it = -1
    E(f"s_bitcmp1_b32 s{sLAY}, 0")
    E("s_cselect_b32 s53, 32, 16")
    cpoll(E, name, [sR], "s53", SWS, 50)
    for k in range(6): a_load(k)
    E(f"v_lshrrev_b32 v{vH}, 5, v{vL}")
    E(f"v_and_b32 v{vI}, 15, v0")
    E(f"v_lshrrev_b32 v{t0}, 2, v{vI}")
    E(f"v_lshl_add_u32 v{t0}, v{vH}, 2, v{t0}")
    E(f"v_lshlrev_b32 v{t0}, 7, v{t0}")
    E(f"v_bfe_u32 v{t1}, v{vL}, 4, 1")
    E(f"v_lshl_add_u32 v{t0}, v{t1}, 5, v{t0}")
    E(f"v_and_b32 v{t1}, 3, v{vI}")
    E(f"v_lshl_add_u32 v{t0}, v{t1}, 3, v{t0}")
    E(f"v_lshrrev_b32 v{t1}, 3, v{vI}")
    E(f"v_lshlrev_b32 v{t2}, 6, v{t1}")
    E(f"v_add_u32 v{vRb[0]}, v{t0}, v{t2}")
    E(f"v_sub_u32 v{vRb[1]}, v{t0}, v{t2}")
    E(f"s_add_u32 s{sSl}, s{sSL0}, 16384")
    for t in range(2):
        E(f"v_add_u32 v{vRs[0][t]}, s{sSL0}, v{vRb[t]}")
        E(f"v_add_u32 v{vRs[1][t]}, s{sSl}, v{vRb[t]}")
    E(f"s_mov_b32 s{sPRE}, 0")
    E(f"s_mov_b32 s{sSL0}, 0")
    for i in range(32): E(f"v_mov_b32 v{ACC+i}, 0")
    for k in range(6, D): a_load(k)
    E(f"s_lshl_b32 s3, s{sCT}, 12")
    E("s_add_u32 s48, s3, s42")
    E("s_add_u32 s43, s48, s20")
    for i in range(4):
        pipe.vmem(f"buffer_load_dwordx4 v[{XO+4*i}:{XO+4*i+3}], v{vAoff}, s[{SWS}:{SWS+3}], s43 offen offset:{1024*i}{LDF}", ('X', 0))
    for i in range(4): E(f"s_mov_b32 s{sA[i]}, {D*1024+4096*i}")
    E(f"s_mov_b32 s{sCnt}, 4")
    E("s_barrier")
    stamp(E, 1)
    for k in range(BD):
        for t in range(2): b_read(k, t, 0)
    for k in range(64):
        pipe.it = k // 16
        stage, s = k // 8, k % 8
        q = k % 16
        if s == 8 - BD:
            E("s_barrier")
        pipe.wait(vm=[('A', k)], lg=[('B', k, 0), ('B', k, 1)])
        for t in range(2):
            b = BS + (k % 4) * 8 + t * 4
            a = AR + 4 * (k % 16)
            acc = ACC + 16 * t
            E(f"v_mfma_f32_32x32x16_bf16 v[{acc}:{acc+15}], v[{b}:{b+3}], v[{a}:{a+3}], v[{acc}:{acc+15}]")
            b_read(k + BD, t, k)
            if t == 0: a_load(k + D)
        if s == 7 - BD:
            E(f"s_add_u32 s{sSl}, s{sSl}, 16384")
            E(f"s_sub_u32 s3, s{sSl}, {WO_WRAP}")
            E(f"s_cmp_ge_u32 s{sSl}, {WO_WRAP}")
            E(f"s_cselect_b32 s{sSl}, s3, s{sSl}")
            for t in range(2): E(f"v_add_u32 v{vRs[stage%2][t]}, s{sSl}, v{vRb[t]}")
        if q == 15:
            for sx in sA: E(f"s_add_u32 s{sx}, s{sx}, 16384")
            E(f"s_sub_u32 s{sCnt}, s{sCnt}, 1")
            E(f"s_cmp_lg_u32 s{sCnt}, 0")
    pipe.fold(p, 4, f"{name}_loop", f"s_cbranch_scc1 {name}_loop")
    stamp(p, 2)
    p("s_mov_b32 s46, 0xffff0000")
    U = BS
    for r in range(16):
        p(f"v_lshlrev_b32 v{U+2*r}, 16, v{XO+r}")
        p(f"v_and_b32 v{U+2*r+1}, s46, v{XO+r}")
    for r in range(16):
        p(f"v_pk_add_f32 v[{ACC+2*r}:{ACC+2*r+1}], v[{ACC+2*r}:{ACC+2*r+1}], v[{U+2*r}:{U+2*r+1}]")
    for r in range(16):
        p(f"v_cvt_pk_bf16_f32 v{XO+r}, v{ACC+2*r}, v{ACC+2*r+1}")
    if not final:
        p("s_add_u32 s43, s48, s21")
        for i in range(4):
            p(f"buffer_store_dwordx4 v[{XO+4*i}:{XO+4*i+3}], v{vAoff}, s[{SWS}:{SWS+3}], s43 offen offset:{1024*i}{STX}")
        s0, s1 = vT + 2, vT + 3
        p(f"v_mov_b32 v{vT+6}, 0x3f803f80")
        p(f"v_mov_b32 v{s0}, 0")
        p(f"v_mov_b32 v{s1}, 0")
        for r in range(16):
            p(f"v_dot2_f32_bf16 v{s0}, v{XO+r}, v{vT+6}, v{s0}")
            p(f"v_dot2_f32_bf16 v{s1}, v{XO+r}, v{XO+r}, v{s1}")
        p("s_nop 2")
        p(f"v_mov_b32 v{vT+4}, v{s0}")
        p(f"v_mov_b32 v{vT+5}, v{s1}")
        p(f"v_permlane32_swap_b32 v{s0}, v{vT+4}")
        p(f"v_permlane32_swap_b32 v{s1}, v{vT+5}")
        p(f"v_pk_add_f32 v[{s0}:{s1}], v[{s0}:{s1}], v[{vT+4}:{vT+5}]")
        p(f"v_and_b32 v{vT}, 31, v{vL}")
        p(f"v_lshlrev_b32 v{vT}, 4, v{vT}")
        p(f"s_lshl_b32 s3, s{sR}, 12")
        p(f"s_bfe_u32 s43, s{sCT}, 0x20001")
        p("s_lshl_b32 s43, s43, 10")
        p("s_add_u32 s3, s3, s43")
        p(f"s_lshr_b32 s43, s{sCT}, 3")
        p("s_lshl_b32 s43, s43, 9")
        p("s_add_u32 s3, s3, s43")
        p(f"s_and_b32 s43, s{sCT}, 1")
        p("s_lshl_b32 s43, s43, 3")
        p("s_add_u32 s3, s3, s43")
        p("s_add_u32 s3, s3, s22")
        p(f"buffer_store_dwordx2 v[{s0}:{s1}], v{vT}, s[{SWS}:{SWS+3}], s3 offen{STFLAG}")
    else:
        srd(p, SA, 44, 45, 4 * MB)
        FV = os.environ.get("WOF", "lds")
        if FV == "lds":
            p("s_barrier")
            p(f"v_and_b32 v{vT}, 31, v{vL}")
            p(f"v_mul_u32_u24 v{vT}, 144, v{vT}")
            p(f"v_lshl_add_u32 v{vT}, v{vH}, 3, v{vT}")
            p(f"v_mul_u32_u24 v{vT+1}, 4608, v{vW}")
            p(f"v_add_u32 v{vT}, v{vT}, v{vT+1}")
            for i in range(4):
                for g in range(2):
                    p(f"ds_write_b64 v{vT}, v[{XO+4*i+2*g}:{XO+4*i+2*g+1}] offset:{32*i+16*g}")
            p(f"v_lshrrev_b32 v{vT+2}, 3, v{vL}")
            p(f"v_and_b32 v{vT+3}, 7, v{vL}")
            p(f"v_mul_u32_u24 v{vT+4}, 144, v{vT+2}")
            p(f"v_lshl_add_u32 v{vT+4}, v{vT+3}, 4, v{vT+4}")
            p(f"v_add_u32 v{vT+4}, v{vT+4}, v{vT+1}")
            p(f"v_lshlrev_b32 v{vT+5}, 11, v{vT+2}")
            p(f"v_lshl_add_u32 v{vT+5}, v{vT+3}, 4, v{vT+5}")
            p(f"s_lshl_b32 s3, s{sR}, 16")
            p(f"s_lshl_b32 s43, s{sCT}, 7")
            p("s_add_u32 s3, s3, s43")
            p("s_waitcnt lgkmcnt(0)")
            for i in range(4):
                p(f"ds_read_b128 v[{ACC+4*i}:{ACC+4*i+3}], v{vT+4} offset:{1152*i}")
            for i in range(4):
                p(f"s_waitcnt lgkmcnt({3-i})")
                p(f"buffer_store_dwordx4 v[{ACC+4*i}:{ACC+4*i+3}], v{vT+5}, s[{SA}:{SA+3}], s3 offen{STFLAG}")
                p("s_add_u32 s3, s3, 16384")
        else:
            p(f"v_and_b32 v{vT}, 31, v{vL}")
            p(f"v_lshlrev_b32 v{vT}, 11, v{vT}")
            p(f"v_lshl_add_u32 v{vT}, v{vH}, 4, v{vT}")
            p(f"s_lshl_b32 s3, s{sR}, 16")
            p(f"s_lshl_b32 s43, s{sCT}, 7")
            p("s_add_u32 s3, s3, s43")
            for i in range(4):
                b = XO + 4 * i
                p(f"v_permlane32_swap_b32 v{b}, v{b+2}")
                p(f"v_permlane32_swap_b32 v{b+1}, v{b+3}")
                p(f"buffer_store_dwordx4 v[{b}:{b+3}], v{vT}, s[{SA}:{SA+3}], s3 offen offset:{32*i}{'' if FV == 'plain' else STFLAG}")
    stamp_out(p, 4, 2, SWS, vT, sW)
    cpublish(p, sR, SWS, 50)
    p.label(f"{name}_idle")
    p(f"s_and_b32 s{sWb}, s{sW}, 3")
    p(f"s_lshr_b32 s{sWr}, s{sPRE}, 4")
    wo_load_stages(p, f"{name}_ld", vDma, SWo, sWb, sWr, 8, 50)
    p(f"s_mov_b32 s{sPRE}, 0")
    p(f"s_mov_b32 s{sSL0}, 0")
    for st in range(8):
        p(f"s_waitcnt vmcnt({(7-st)*4})")
        p("s_barrier")
    idle_barriers(p, 2 if final else 1)
    return p, 176

ATT_CH = 16384
ATT_NB = 4
ATT_FLG = 157696
ATT_LDS = ATT_FLG + 64

def gen_attn():
    p = Prog()
    name = "attn"
    p(".p2align 6")
    p.label("attn_body")
    stamp(p, 0)
    p(f"s_load_dwordx2 s[6:7], s[0:1], {KA_WS}")
    vL, vW = 1, 2
    vOff = 4
    vRd = [5, 7]
    vDm = 6
    vT = 8
    Qr = [16, 24]
    CM = [32, 48]
    S = [64, 80]
    Pk = [96, 104]
    Kr = [112, 120]
    Vr = [128, 136]
    OA = [144, 160]
    LA = [176, 180]
    SEL = 184
    NV = 188
    sW, sHd, sQB, sR = 8, 9, 10, 11
    SK, SV, SWS = 12, 16, 28
    sD, sCnt, sWb, sRedo, sG = 32, 34, 35, 36, 37
    p(f"v_and_b32 v{vL}, 63, v0")
    p(f"v_lshrrev_b32 v{vW}, 6, v0")
    p(f"v_lshlrev_b32 v{vOff}, 4, v{vL}")
    p(f"v_readfirstlane_b32 s{sW}, v{vW}")
    if ROWMAP:
        p(f"s_and_b32 s{sQB}, s2, 7")
        p(f"s_lshr_b32 s{sHd}, s2, 3")
    else:
        p("s_and_b32 s3, s2, 7")
        p("s_lshl_b32 s3, s3, 2")
        p("s_bfe_u32 s4, s2, 0x20003")
        p(f"s_add_u32 s{sHd}, s3, s4")
        p(f"s_lshr_b32 s{sQB}, s2, 5")
    p(f"s_lshl_b32 s3, s{sQB}, 3")
    p(f"s_and_b32 s4, s{sW}, 3")
    p(f"s_lshl_b32 s4, s4, 1")
    p(f"s_add_u32 s{sR}, s3, s4")
    p(f"s_lshr_b32 s{sG}, s{sW}, 2")
    p(f"v_lshl_add_u32 v{vDm}, v{vW}, 10, v{vOff}")
    p(f"s_lshl_b32 s{sWb}, s{sW}, 10")
    p(f"s_load_dwordx2 s[44:45], s[0:1], {KA_WO_B}")
    vWo = 3
    wo_lane(p, vWo, vL, vT, 40)
    p(f"s_lshl_b32 s3, s{sHd}, 17")
    p(f"s_lshr_b32 s4, s{sLAY}, 1")
    p(f"s_mul_i32 s4, s4, {12*MB}")
    p("s_add_u32 s3, s3, s4")
    p(f"s_add_u32 s4, s3, {KF}")
    p(f"s_add_u32 s5, s3, {VF}")
    p(f"s_lshl_b32 s20, s{sQB}, 14")
    p("s_add_u32 s20, s20, s3")
    p(f"s_add_u32 s20, s20, {QF}")
    p(f"s_mov_b32 s{sRedo}, 0")
    p(f"s_lshl_b32 s3, s{sG}, 12")
    p(f"v_add_u32 v{vRd[0]}, s3, v{vOff}")
    p("s_waitcnt lgkmcnt(0)")
    SWO = 24
    srd(p, SWO, 44, 45, 2 * MB)
    sPf, sPl = 42, 43
    srd_off(p, SK, 6, 7, "s4", 131072)
    srd_off(p, SV, 6, 7, "s5", 131072)
    srd(p, SWS, 6, 7, WSR)
    vFl = 7
    p(f"s_lshr_b32 s49, s{sHd}, 1")
    p("s_lshl_b32 s49, s49, 3")
    p(f"s_add_u32 s3, s49, s{sQB}")
    cpoll(p, name, [3], 8, SWS, 38)
    sAll, sN, sD0 = 46, 47, 48
    p(f"s_mov_b32 s{sAll}, s{sW}")
    p(f"s_lshl_b32 s{sD0}, s{sQB}, 14")
    p.label(f"{name}_restart")
    pipe = Pipe()
    E = pipe.emit
    def dma(ch, soff, m0txt):
        E(m0txt)
        pipe.vmem(f"buffer_load_dwordx4 v{vDm}, s[{SK}:{SK+3}], {soff} offen{LDF} lds", ('D', ch))
        E("s_add_u32 m0, m0, 8192")
        pipe.vmem(f"buffer_load_dwordx4 v{vDm}, s[{SV}:{SV+3}], {soff} offen{LDF} lds", ('D', ch))
    def rd(i, j, isv):
        b = (i // 2) % ATT_NB
        return f"v{vRd[0]} offset:{b*ATT_CH + isv*8192 + (i%2)*2048 + 1024*j}"
    def k_read(i, j):
        pipe.lds(f"ds_read_b128 v[{Kr[i%2]+4*j}:{Kr[i%2]+4*j+3}], {rd(i, j, 0)}", ('K', i))
    def v_read(i, j):
        pipe.lds(f"ds_read_b128 v[{Vr[i%2]+4*j}:{Vr[i%2]+4*j+3}], {rd(i, j, 1)}", ('V', i))
    def m_s(x, i, j, cin=None):
        s = S[x]; k = Kr[i % 2] + 4 * j; q = Qr[x] + 4 * j
        c = (cin or f"v[{CM[x]}:{CM[x]+15}]") if j == 0 else f"v[{s}:{s+15}]"
        return f"v_mfma_f32_32x32x16_bf16 v[{s}:{s+15}], v[{k}:{k+3}], v[{q}:{q+3}], {c}"
    def m_pv(x, i, j):
        v = Vr[i % 2] + 4 * j; pk = Pk[x] + 4 * j; o = OA[x]
        return f"v_mfma_f32_32x32x16_bf16 v[{o}:{o+15}], v[{v}:{v+3}], v[{pk}:{pk+3}], v[{o}:{o+15}]"
    def m_sum(x, j):
        pk = Pk[x] + 4 * j; l = LA[x]
        return f"v_mfma_f32_16x16x32_bf16 v[{l}:{l+3}], v[{SEL}:{SEL+3}], v[{pk}:{pk+3}], v[{l}:{l+3}]"
    pipe.it = -1
    E(f"s_mov_b32 m0, s{sWb}")
    pipe.vmem(f"buffer_load_dwordx4 v{vDm}, s[{SK}:{SK+3}], s{sD0} offen{LDF} lds", ('D', 0))
    E(f"s_add_u32 m0, s{sWb}, {3*ATT_CH}")
    pipe.vmem(f"buffer_load_dwordx4 v{vDm}, s[{SWS}:{SWS+3}], s20 offen{LDF} lds", ('D', 0))
    E(f"s_add_u32 m0, s{sWb}, {3*ATT_CH + 8192}")
    E("s_add_u32 s3, s20, 8192")
    pipe.vmem(f"buffer_load_dwordx4 v{vDm}, s[{SWS}:{SWS+3}], s3 offen{LDF} lds", ('D', 0))
    E(f"s_add_u32 m0, s{sWb}, 8192")
    pipe.vmem(f"buffer_load_dwordx4 v{vDm}, s[{SV}:{SV+3}], s{sD0} offen{LDF} lds", ('D', 0))
    E(f"s_add_u32 s{sD}, s{sD0}, 8192")
    dma(1, f"s{sD}", f"s_add_u32 m0, s{sWb}, {ATT_CH}")
    E(f"s_lshl_b32 s{sPf}, s{sW}, 14")
    E(f"s_add_u32 s{sPl}, s{sWb}, 65536")
    E(f"s_cmp_eq_u32 s{sPH}, s{sLAST}")
    E(f"s_cselect_b32 s{sPl}, {DROP}, s{sPl}")
    E(f"s_cselect_b32 s{sPRE}, 0, 80")
    E(f"s_cselect_b32 s{sSL0}, 0, 65536")
    E(f"v_and_b32 v{vT}, 15, v{vL}")
    E(f"v_bfe_u32 v{vT+1}, v{vL}, 4, 1")
    E(f"v_cmp_eq_u32 vcc, v{vT}, v{vT+1}")
    E(f"v_mov_b32 v{vT+2}, 0x3f803f80")
    for i in range(4): E(f"v_cndmask_b32 v{SEL+i}, 0, v{vT+2}, vcc")
    for x in range(2):
        for i in range(16): E(f"v_mov_b32 v{OA[x]+i}, 0")
        for i in range(4): E(f"v_mov_b32 v{LA[x]+i}, 0")
    for i in range(8): E(f"v_mov_b32 v{Pk[1]+i}, 0")
    for i in range(8): E(f"v_mov_b32 v{Vr[1]+i}, 0")
    pipe.wait(vm=[('D', 0)])
    E("s_barrier")
    stamp(E, 1)
    E(f"v_and_b32 v{vT}, 3, v{vW}")
    E(f"v_lshl_add_u32 v{vT}, v{vT}, 12, v{vOff}")
    E(f"v_add_u32 v{vT}, {3*ATT_CH}, v{vT}")
    for x in range(2):
        for j in range(2):
            E(f"ds_read_b128 v[{Qr[x]+4*j}:{Qr[x]+4*j+3}], v{vT} offset:{2048*x+1024*j}")
    E(f"s_cmp_lg_u32 s{sRedo}, 0")
    E(f"s_cbranch_scc1 {name}_havemax")
    for j in range(2):
        E(f"ds_read_b128 v[{Kr[1]+4*j}:{Kr[1]+4*j+3}], v{vOff} offset:{1024*j}")
    E("s_waitcnt lgkmcnt(0)")
    for x in range(2): E(m_s(x, 1, 0, "0"))
    for x in range(2): E(m_s(x, 1, 1))
    for x in range(2):
        m = vT + 2 * x
        E(f"v_max_f32 v{m}, v{S[x]}, v{S[x]+1}")
        for r in range(2, 16, 2):
            E(f"v_max3_f32 v{m}, v{m}, v{S[x]+r}, v{S[x]+r+1}")
        E(f"v_mov_b32 v{m+1}, v{m}")
        E(f"v_permlane32_swap_b32 v{m}, v{m+1}")
        E(f"v_max_f32 v{m}, v{m}, v{m+1}")
        for r in range(16): E(f"v_sub_f32 v{CM[x]+r}, 0, v{m}")
    E(f"{name}_havemax:")
    k_read(0, 0); k_read(0, 1)
    E("s_waitcnt lgkmcnt(0)")
    E(m_s(0, 0, 0)); E(m_s(0, 0, 1))
    E(f"s_add_u32 s{sD}, s{sD0}, 16384")
    E(f"s_and_b32 s{sD}, s{sD}, 0x1ffff")
    E(f"s_mov_b32 s{sN}, 2")
    E(f"s_mov_b32 s{sCnt}, 4")
    AV = os.environ.get("ATT_VAR", "")
    if 'p' in AV or 'q' in AV:
        E(f"s_cmp_eq_u32 s{sG}, {0 if 'p' in AV else 1}")
        E(f"s_cbranch_scc1 {name}_noprio")
        E("s_setprio 1")
        E(f"{name}_noprio:")
    E("s_nop 9")
    def phase(x, mf, extras):
        s = S[x]; pk = Pk[x]
        ex = [f"v_exp_f32 v{s+r}, v{s+r}" for r in range(16)]
        cv = [f"v_cvt_pk_bf16_f32 v{pk+r}, v{s+2*r}, v{s+2*r+1}" for r in range(8)]
        seq = [mf[0], ex[0], ex[1], ex[2], mf[1], ex[3], ex[4], ex[5], mf[2], ex[6], ex[7], ex[8],
               mf[3], ex[9], cv[0], cv[1], mf[4], ex[10], ex[11], ex[12], mf[5], ex[13], cv[2], cv[3],
               ex[14], ex[15], cv[4], cv[5], cv[6], cv[7]]
        if 'a' in AV:
            seq = [mf[0], ex[0], ex[1], ex[2], ex[3], mf[1], ex[4], ex[5], cv[0], cv[1], mf[2], ex[6], ex[7], ex[8],
                   mf[3], ex[9], cv[2], cv[3], mf[4], ex[10], ex[11], ex[12], cv[4], mf[5], ex[13], ex[14], ex[15], cv[5], cv[6], cv[7]]
        if 'b' in AV:
            seq = [mf[0], ex[0], ex[1], ex[2], ex[3], ex[4], mf[1], ex[5], ex[6], ex[7], cv[0], cv[1], mf[2], mf[3], ex[8], ex[9], ex[10], ex[11],
                   cv[2], cv[3], mf[4], mf[5], ex[12], ex[13], ex[14], ex[15], cv[4], cv[5], cv[6], cv[7]]
        for n, ins in enumerate(seq):
            for f in extras.get(n, []): f()
            E(ins)
    NT = 32
    for i in range(NT):
        pipe.it = i // 8
        ch, s4 = i // 2, (i % 2) * 3
        exA = {}
        if s4 == 3:
            def sync(ch=ch):
                if ch % 4 == 0:
                    E(f"s_cmp_lg_u32 s{sAll}, 0")
                    E(f"s_cbranch_scc1 {name}2_skip")
                    cpoll(E, name + "2", (49, 8), 8, SWS, 38)
                    E(f"s_mov_b32 s{sAll}, 1")
                    E(f"{name}2_skip:")
                pipe.wait(vm=[('D', ch + 1)])
                E("s_barrier")
            exA[1] = [sync]
        exA.setdefault(2, []).append(lambda i=i: k_read(i + 1, 0))
        exA.setdefault(3, []).append(lambda i=i: k_read(i + 1, 1))
        exA.setdefault(6, []).append(lambda i=i: v_read(i, 0))
        exA.setdefault(7, []).append(lambda i=i: v_read(i, 1))
        phase(0, [m_s(1, i, 0), m_s(1, i, 1), m_pv(1, i - 1, 0), m_sum(1, 0), m_pv(1, i - 1, 1), m_sum(1, 1)], exA)
        exB = {0: [lambda i=i: pipe.wait(lg=[('K', i + 1), ('V', i)])]}
        if s4 == 3:
            def dm(ch=ch):
                E(f"s_cmp_lt_u32 s{sN}, 16")
                E(f"s_cselect_b32 s3, s{sWb}, {DROP}")
                E(f"s_cselect_b32 s4, s{sD}, {1*MB}")
                dma(ch + 2, "s4", f"s_add_u32 m0, s3, {((ch+2)%ATT_NB)*ATT_CH}")
                E(f"s_add_u32 s{sD}, s{sD}, 8192")
                E(f"s_and_b32 s{sD}, s{sD}, 0x1ffff")
                E(f"s_add_u32 s{sN}, s{sN}, 1")
                E(f"s_cmp_lt_u32 s{sPl}, {WO_WRAP}")
                E(f"s_cselect_b32 m0, s{sPl}, {DROP}")
                E(f"s_cselect_b32 s3, s{sPf}, {4*MB}")
                pipe.vmem(f"buffer_load_dwordx4 v{vWo}, s[{SWO}:{SWO+3}], s3 offen lds", ('W', ch))
                E(f"s_add_u32 s{sPf}, s{sPf}, {8*16384}")
                E(f"s_add_u32 s{sPl}, s{sPl}, 8192")
            exB[10] = [dm]
        phase(1, [m_s(0, i + 1, 0), m_s(0, i + 1, 1), m_pv(0, i, 0), m_sum(0, 0), m_pv(0, i, 1), m_sum(0, 1)], exB)
        if i % 8 == 7:
            E(f"s_sub_u32 s{sCnt}, s{sCnt}, 1")
            E(f"s_cmp_lg_u32 s{sCnt}, 0")
    pipe.fold(p, 4, f"{name}_loop", f"s_cbranch_scc1 {name}_loop")
    for t in (m_pv(1, NT - 1, 0), m_sum(1, 0), m_pv(1, NT - 1, 1), m_sum(1, 1)): p(t)
    stamp(p, 2)
    for dst, x in ((vT, 0), (vT + 1, 4)):
        p(f"s_xor_b32 s3, s{sW}, {x}")
        p("s_mul_i32 s4, s3, 5120")
        p("s_cmp_ge_u32 s3, 6")
        p(f"s_cselect_b32 s3, {WO_WRAP - 6*5120}, 0")
        p("s_add_u32 s4, s4, s3")
        p(f"v_add_u32 v{dst}, s4, v{vOff}")
    p(f"v_mov_b32 v{vT+6}, {f32bits(2.0**63):#x}")
    p(f"v_lshlrev_b32 v{vT+7}, 2, v{vW}")
    p(f"v_add_u32 v{vT+7}, {ATT_FLG}, v{vT+7}")
    p(f"v_add_f32 v{vT+4}, v{LA[0]}, v{LA[0]+1}")
    p(f"v_add_f32 v{vT+5}, v{LA[1]}, v{LA[1]+1}")
    p(f"v_add_f32 v{vT+4}, v{vT+4}, v{vT+5}")
    p(f"v_cmp_nlt_f32 vcc, v{vT+4}, v{vT+6}")
    p("s_cmp_lg_u64 vcc, 0")
    p("s_cselect_b32 s3, 1, 0")
    p(f"v_mov_b32 v{vT+6}, s3")
    p(f"ds_write_b32 v{vT+7}, v{vT+6}")
    p(f"s_cmp_eq_u32 s{sG}, 0")
    p(f"s_cbranch_scc1 {name}_g0")
    for i in range(4): p(f"ds_write_b128 v{vT}, v[{OA[0]+4*i}:{OA[0]+4*i+3}] offset:{1024*i}")
    p(f"ds_write_b64 v{vT}, v[{LA[0]}:{LA[0]+1}] offset:4096")
    p("s_nop 1")
    for i in range(16): p(f"v_mov_b32 v{OA[0]+i}, v{OA[1]+i}")
    for i in range(2): p(f"v_mov_b32 v{LA[0]+i}, v{LA[1]+i}")
    p(f"s_branch {name}_xch")
    p.label(f"{name}_g0")
    for i in range(4): p(f"ds_write_b128 v{vT}, v[{OA[1]+4*i}:{OA[1]+4*i+3}] offset:{1024*i}")
    p(f"ds_write_b64 v{vT}, v[{LA[1]}:{LA[1]+1}] offset:4096")
    p.label(f"{name}_xch")
    p(f"v_mov_b32 v{vT+7}, {ATT_FLG}")
    p("s_waitcnt lgkmcnt(0)")
    p("s_barrier")
    p(f"ds_read_b64 v[{S[1]}:{S[1]+1}], v{vT+1} offset:4096")
    p(f"ds_read_b128 v[{S[1]+4}:{S[1]+7}], v{vT+7}")
    p(f"ds_read_b128 v[{S[1]+8}:{S[1]+11}], v{vT+7} offset:16")
    for i in range(4): p(f"ds_read_b128 v[{S[0]+4*i}:{S[0]+4*i+3}], v{vT+1} offset:{1024*i}")
    p(f"v_and_b32 v{vT}, 15, v{vL}")
    p(f"v_lshlrev_b32 v{vT}, 2, v{vT}")
    p(f"v_bfe_u32 v{vT+1}, v{vL}, 4, 1")
    p(f"v_cmp_eq_u32 vcc, 0, v{vT+1}")
    p("s_waitcnt lgkmcnt(4)")
    p(f"v_pk_add_f32 v[{LA[0]}:{LA[0]+1}], v[{LA[0]}:{LA[0]+1}], v[{S[1]}:{S[1]+1}]")
    p(f"ds_bpermute_b32 v{vT+2}, v{vT}, v{LA[0]}")
    p(f"ds_bpermute_b32 v{vT+3}, v{vT}, v{LA[0]+1}")
    F = S[1] + 4
    p(f"v_or3_b32 v{vT+6}, v{F}, v{F+1}, v{F+2}")
    p(f"v_or3_b32 v{vT+6}, v{vT+6}, v{F+3}, v{F+4}")
    p(f"v_or3_b32 v{vT+6}, v{vT+6}, v{F+5}, v{F+6}")
    p(f"v_or_b32 v{vT+6}, v{vT+6}, v{F+7}")
    p(f"v_readfirstlane_b32 s3, v{vT+6}")
    o = OA[0]
    p("s_waitcnt lgkmcnt(2)")
    for r in range(0, 16, 2):
        p(f"v_pk_add_f32 v[{o+r}:{o+r+1}], v[{o+r}:{o+r+1}], v[{S[0]+r}:{S[0]+r+1}]")
    p("s_waitcnt lgkmcnt(0)")
    p(f"v_cndmask_b32 v{vT+2}, v{vT+3}, v{vT+2}, vcc")
    p(f"s_andn2_b32 s3, s3, s{sRedo}")
    p("s_cmp_lg_u32 s3, 0")
    p(f"s_cbranch_scc1 {name}_slow")
    p.label(f"{name}_fin")
    p(f"v_rcp_f32 v{vT+2}, v{vT+2}")
    p(f"s_add_u32 s21, s{sR}, s{sG}")
    p(f"s_lshl_b32 s3, s21, 16")
    p(f"s_lshl_b32 s4, s{sHd}, 11")
    p("s_add_u32 s3, s3, s4")
    p(f"s_lshl_b32 s4, s{sLAY}, 22")
    p("s_add_u32 s3, s3, s4")
    p(f"s_add_u32 s3, s3, {OF}")
    l = vT + 2
    for r in range(0, 16, 2):
        p(f"v_pk_mul_f32 v[{o+r}:{o+r+1}], v[{l}:{l+1}], v[{o+r}:{o+r+1}] op_sel_hi:[0,1]")
    for r in range(8):
        p(f"v_cvt_pk_bf16_f32 v{o+r}, v{o+2*r}, v{o+2*r+1}")
    for j in range(2):
        p(f"buffer_store_dwordx4 v[{o+4*j}:{o+4*j+3}], v{vOff}, s[{SWS}:{SWS+3}], s3 offen offset:{1024*j}{STX}")
    stamp_out(p, 4, 3, SWS, vT, sW)
    cpublish(p, 21, SWS, 38)
    p.label(f"{name}_slow")
    p("s_waitcnt vmcnt(0)")
    p("s_barrier")
    p(f"s_mov_b32 s{sRedo}, 1")
    p(f"s_mov_b32 s{sD}, 0")
    for x in range(2): p(f"v_mov_b32 v{vT+2*x}, 0xff800000")
    p.label(f"{name}_slow_loop")
    for j in range(2):
        p(f"buffer_load_dwordx4 v[{Kr[0]+4*j}:{Kr[0]+4*j+3}], v{vOff}, s[{SK}:{SK+3}], s{sD} offen offset:{1024*j}{LDF}")
    p("s_waitcnt vmcnt(0)")
    for x in range(2): p(m_s(x, 0, 0, "0"))
    for x in range(2): p(m_s(x, 0, 1))
    for x in range(2):
        m = vT + 2 * x
        for r in range(0, 16, 2):
            p(f"v_max3_f32 v{m}, v{m}, v{S[x]+r}, v{S[x]+r+1}")
    p(f"s_add_u32 s{sD}, s{sD}, 2048")
    p(f"s_cmp_lt_u32 s{sD}, 131072")
    p(f"s_cbranch_scc1 {name}_slow_loop")
    for x in range(2):
        m = vT + 2 * x
        p(f"v_mov_b32 v{m+1}, v{m}")
        p(f"v_permlane32_swap_b32 v{m}, v{m+1}")
        p(f"v_max_f32 v{m}, v{m}, v{m+1}")
        for r in range(16): p(f"v_sub_f32 v{CM[x]+r}, 0, v{m}")
    p(f"s_branch {name}_restart")
    return p, NV

HEADER = open('interleave_layers__sliding_local_dilated__softmax_full_mha__prompt.s.ref').read().split('; Override launch')[0]

def build():
    s = HEADER
    s += "; Generated by gen/gen6.py (hand-written generator): single persistent kernel, 11 phases chained with flags.\n"
    s += f"; @launch grid=(256,1,1) block=(512,1,1) lds={MEGA_LDS}\n"
    s += '.amdgcn_target "amdgcn-amd-amdhsa--gfx950"\n.text\n'
    s += f".globl {KNAME}\n.type {KNAME},@function\n"
    s += render(fix_hazards(gen_dispatch().insts))
    for p, nv in (gen_prep(), gen_qkv('A'), gen_wo(False), gen_qkv('B'), gen_attn(), gen_wo(True)):
        s += render(fix_hazards(p.insts))
    s += '    s_endpgm\n'
    s += '.section .rodata,"a"\n.p2align 6\n' + kernel_desc(KNAME, (224, 32))
    return s

if __name__ == "__main__":
    if "--stamps" in sys.argv:
        STAMPS = True; sys.argv.remove("--stamps")
    out = sys.argv[1] if len(sys.argv) > 1 else "interleave_layers__sliding_local_dilated__softmax_full_mha__prompt.s"
    open(out, "w").write(build())
    print("wrote", out)
```
